```python
import torch

def _softmax(x, axis=-1):
    return torch.softmax(x, dim=axis)
def _gelu(x):
    return torch.nn.functional.gelu(x, approximate="tanh")
def _silu(x):
    return torch.nn.functional.silu(x)
def _sigmoid(x):
    return torch.sigmoid(x)
def _layernorm(x, axis=-1, eps=1e-5):
    m = x.mean(dim=axis, keepdim=True)
    v = x.var(dim=axis, keepdim=True, unbiased=False)
    return (x - m) / torch.sqrt(v + eps)
def _scatter_add(tgt, idx, src, axis=0):
    return tgt.clone().index_add_(axis, idx, src)
def _segment_sum(src, seg, n):
    out = torch.zeros((n,) + src.shape[1:], dtype=src.dtype)
    return out.index_add_(0, seg, src)
def _pad(x, pw):
    flat = tuple(v for pair in reversed(pw) for v in pair)
    return torch.nn.functional.pad(x, flat)

kernel_name = 'parallel_sum__sliding_local_dilated__mixer_s_mlp__prompt'

def setup_inputs():

    _w = (lambda a: (lambda t: t.to(torch.bfloat16) if t.is_floating_point() else t)(torch.as_tensor(a)))
    def _A_setup():
        B, S, D = 1, 2048, 1024
        return {
            "x": _w((lambda *s: torch.randn(*s, dtype=torch.bfloat16) * 0.05)(B, S, D)),
            "wqkv": _w((lambda *s: torch.randn(*s, dtype=torch.bfloat16) * 0.05)(D, 3 * D)),
            "wo": _w((lambda *s: torch.randn(*s, dtype=torch.bfloat16) * 0.05)(D, D)),
        }
    _A_in = _A_setup()

    def _B_setup():
        B, S, D, F = 1, 2048, 1024, 3584
        return {
            "x":  _w((lambda *s: torch.randn(*s, dtype=torch.bfloat16) * 0.05)(B, S, D)),
            "w1": _w((lambda *s: torch.randn(*s, dtype=torch.bfloat16) * 3.2)(D, D) * (D ** -0.5)),
            "w2": _w((lambda *s: torch.randn(*s, dtype=torch.bfloat16) * 3.2)(D, D) * (D ** -0.5)),
            "w3": _w((lambda *s: torch.randn(*s, dtype=torch.bfloat16) * 3.2)(D, F) * (D ** -0.5)),
            "w4": _w((lambda *s: torch.randn(*s, dtype=torch.bfloat16) * 1.6)(F, D) * (F ** -0.5)),
        }
    _B_in = _B_setup()

    return {
        "A_x": _A_in["x"],
        "A_wqkv": _A_in["wqkv"],
        "A_wo": _A_in["wo"],
        "B_x": _B_in["x"],
        "B_w1": _B_in["w1"],
        "B_w2": _B_in["w2"],
        "B_w3": _B_in["w3"],
        "B_w4": _B_in["w4"],
    }

def reference(A_x, A_wqkv, A_wo, B_x, B_w1, B_w2, B_w3, B_w4):
    def _A_ref(x, wqkv, wo):
        B, S, D = x.shape
        H = 32; Dh = D // H
        W, dil = 8, 2
        qkv = (lambda x, *d: x.permute(*d))((x @ wqkv).reshape(B, S, 3, H, Dh), 2, 0, 3, 1, 4)
        q, k, v = qkv[0], qkv[1], qkv[2]
        scale = Dh ** -0.5
        pos = torch.arange(S)
        off = torch.arange(W) * dil
        idx = pos[:, None] - off[None, :]
        mask = idx >= 0
        idx_c = torch.where(mask, idx, 0).reshape(-1)
        kg = k[:, :, idx_c, :].reshape(B, H, S, W, Dh)
        vg = v[:, :, idx_c, :].reshape(B, H, S, W, Dh)
        logits = torch.einsum("bhsd,bhswd->bhsw", q, kg) * scale
        logits = torch.where(mask[None, None, :, :], logits, -1e9)
        attn = _softmax(logits, axis=-1)
        o = torch.einsum("bhsw,bhswd->bhsd", attn, vg)
        return (lambda x, *d: x.permute(*d))(o, 0, 2, 1, 3).reshape(B, S, D) @ wo

    def _B_ref(x, w1, w2, w3, w4):
        B, S, D = x.shape
        h = _gelu(_layernorm(x, axis=-1) @ w1)
        c = D // 4
        g0 = _pad(h[:, :, 0*c:1*c], ((0, 0), (1, 0), (0, 0)))[:, :S, :]
        g1 = _pad(h[:, :, 1*c:2*c], ((0, 0), (0, 1), (0, 0)))[:, 1:, :]
        g2 = _pad(h[:, :, 2*c:3*c], ((0, 0), (2, 0), (0, 0)))[:, :S, :]
        g3 = _pad(h[:, :, 3*c:   ], ((0, 0), (0, 2), (0, 0)))[:, 2:, :]
        hs = torch.concatenate([g0, g1, g2, g3], axis=-1) @ w2
        x1 = x + hs
        h2 = _gelu(_layernorm(x1, axis=-1) @ w3) @ w4
        return x1 + h2

    x = A_x
    xn = _layernorm(x, axis=-1)
    return x + _A_ref(xn, A_wqkv, A_wo) + _B_ref(xn, B_w1, B_w2, B_w3, B_w4)
```

```python
import re
TRANS=('v_exp_f32','v_log_f32','v_rcp_f32','v_rsq_f32','v_sqrt_f32')
def regs(tok):
    tok=tok.strip().lstrip('-').strip('|')
    m=re.fullmatch(r'([vsa])\[(\d+):(\d+)\]',tok)
    if m: return {(m.group(1),i) for i in range(int(m.group(2)),int(m.group(3))+1)}
    m=re.fullmatch(r'([vsa])(\d+)',tok)
    if m: return {(m.group(1),int(m.group(2)))}
    if tok=='vcc': return {('s','vcc')}
    if tok=='m0': return {('s','m0')}
    return set()
def parse(line):
    l=line.split(';')[0].strip()
    if not l or l.endswith(':') or l.startswith('.'): return None
    p=l.split(None,1); op=p[0]
    ops=[]
    if len(p)>1:
        for t in re.split(r',\s*(?![^\[]*\])',p[1]): ops.append(t.split()[0] if t.split() else '')
    R=[regs(o) for o in ops]
    U=lambda xs:set().union(*xs) if xs else set()
    if op.startswith('buffer_store') or op.startswith('ds_write') or op.startswith('buffer_atomic') or op.startswith('s_cmp') or ' lds' in l:
        d=set(); s=U(R)
        if ' lds' in l: s=s|{('s','m0')}
    elif 'permlane' in op and 'swap' in op: d=U(R); s=U(R)
    else:
        d=R[0] if R else set(); s=U(R[1:])
        if op.startswith('v_fmac') or op.startswith('v_pk_fmac'): s=s|d
    kind='valu' if op.startswith('v_') else 'salu' if op.startswith('s_') else 'vmem' if op.startswith('buffer') or op.startswith('global') else 'ds'
    if op.startswith('v_mfma'): kind='mfma'
    return dict(op=op,d=d,s=s,kind=kind,R=R)
def need(a,b):
    n=0
    raw=a['d']&b['s']; waw=a['d']&b['d']; war=a['s']&b['d']
    rv={r for r in raw if r[0] in 'va'}; rs={r for r in raw if r[0]=='s'}
    if a['kind']=='valu':
        if rv and b['kind']=='mfma': n=max(n,2)
        if rv and ('permlane' in b['op'] or 'dpp' in b['op']): n=max(n,2)
        if rv and 'readfirstlane' in b['op']: n=max(n,1)
        if rv and a['op'].replace('_e32','').replace('_e64','') in TRANS: n=max(n,1)
        if rs and b['kind'] in('valu','mfma'): n=max(n,2)
        if rs and b['kind']=='vmem': n=max(n,5)
        if rs and b['kind']=='salu': n=max(n,1)
    if a['kind']=='mfma':
        big='32x32' in a['op']; L=12 if big else 8
        if b['kind']=='mfma':
            if a['d']&(b['R'][1]|b['R'][2]): n=max(n,L)
            elif (a['d']&b['R'][3]) and a['d']!=b['R'][3]: n=max(n,L)
            elif waw and a['d']!=b['d']: n=max(n,L)
        else:
            if rv or waw: n=max(n,L)
            if b['kind']=='valu' and (a['R'][3]&b['d']): n=max(n,7 if big else 3)
    if a['kind']=='salu' and ('s','m0') in raw: n=max(n,1)
    if a['kind'] in('vmem','ds') and ('store' in a['op'] or 'write' in a['op']) and war and b['kind'] in('valu','mfma'): n=max(n,2)
    return n
def pad(lines):
    out=[]; hist=[]
    for ln in lines:
        p=parse(ln)
        if p is None: out.append(ln); continue
        k=0
        for a,ago in hist: k=max(k,need(a,p)-ago)
        if k>0:
            out.append(f"s_nop {k-1}"); hist=[(a,g+k) for a,g in hist]
        out.append(ln)
        w=int(ln.split()[1])+1 if p['op']=='s_nop' else 1
        hist=[(a,g+w) for a,g in hist if g+w<14]+[(p,0)]
    return out
class A:
    def __init__(s): s.L=[]
    def __call__(s,t):
        for x in t.split('\n'):
            x=x.strip()
            if x: s.L.append(x)
    def text(s): return "\n".join(pad(s.L))+"\n"
def vr(b,n=4): return f"v[{b}:{b+n-1}]" if n>1 else f"v{b}"
import struct
def fl(x): return "0x%08x"%struct.unpack('<I',struct.pack('<f',x))[0]
```

```python
from asmlib import *
MB=1<<20
XN,HS,OO,X1,RR,GG=0,4*MB,8*MB,12*MB,16*MB,20*MB
CS=36*MB; CSUM=36*MB+65536; ST=37*MB; WSZ=38*MB
KB=131072
MF="v_mfma_f32_16x16x32_bf16"
def header(a,name,ptrs,mapping):
    a(f".globl {name}\n.p2align 8\n.type {name},@function\n{name}:")
    a(f"s_cmp_ge_u32 s2, 256\ns_cbranch_scc1 END_{name}")
    a("s_load_dwordx2 s[4:5], s[0:1], 80")
    for r,o in ptrs: a(f"s_load_dwordx2 s[{r}:{r+1}], s[0:1], {o}")
    a("v_lshrrev_b32 v1, 6, v0\nv_and_b32 v0, 63, v0\nv_readfirstlane_b32 s16, v1")
    if mapping=='8x4':
        a("s_and_b32 s17, s2, 1\ns_lshl_b32 s17, s17, 3\ns_bfe_u32 s19, s2, 0x30003\ns_add_u32 s17, s17, s19")
        a("s_bfe_u32 s18, s2, 0x20001\ns_lshl_b32 s18, s18, 2\ns_lshr_b32 s19, s2, 6\ns_add_u32 s18, s18, s19")
    elif mapping=='4x8':
        a("s_and_b32 s17, s2, 3\ns_lshl_b32 s17, s17, 2\ns_bfe_u32 s19, s2, 0x20003\ns_add_u32 s17, s17, s19")
        a("s_bfe_u32 s18, s2, 0x10002\ns_lshl_b32 s18, s18, 3\ns_lshr_b32 s19, s2, 5\ns_add_u32 s18, s18, s19")
    a(f"s_mov_b32 s6, {WSZ}\ns_mov_b32 s7, 0x20000")
def srd(a,r,size): a(f"s_mov_b32 s{r+2}, {size}\ns_mov_b32 s{r+3}, 0x20000")

class Cfg: pass
def producer(a,c,name):
    KS,R,NS=c.KS,c.R,c.NS; NK=KS//32
    a("s_setprio 1\ns_sub_u32 s16, s16, 4")
    a("v_lshrrev_b32 v6, 3, v0\ns_lshl_b32 s19, s16, 3\nv_add_u32 v6, s19, v6")
    a("v_lshrrev_b32 v7, 4, v0\nv_lshlrev_b32 v7, 1, v7\nv_and_b32 v8, 7, v0\nv_xor_b32 v7, v7, v8\nv_lshlrev_b32 v7, 4, v7")
    for i,rb in enumerate(c.rowb): a(f"s_mov_b32 s19, {rb}\nv_mad_u32_u24 v{2+i}, v6, s19, v7")
    a("s_lshl_b32 s26, s16, 10\ns_lshl_b32 s27, s16, 11\ns_lshl_b32 s31, s16, 8\nv_lshlrev_b32 v6, 4, v0\nv_add_u32 v4, s27, v6\nv_add_u32 v5, s31, v6")
    a("s_mov_b32 s20, 0")
    P=len(c.panels)*NK+2*NK+(1 if c.halo else 0)
    def issue():
        a(f"s_add_u32 s28, s20, s26\ns_add_u32 s29, s20, s27")
        for kk in range(NK):
            a(f"s_add_u32 m0, s29, {c.WB+kk*8192}")
            so="s23"
            if kk: a(f"s_add_u32 s25, s23, {kk*KB}"); so="s25"
            a(f"buffer_load_dwordx4 v4, s[4:7], {so} offen lds\nbuffer_load_dwordx4 v4, s[4:7], {so} offen offset:1024 lds")
            if c.halo:
                a(f"s_add_u32 s25, s20, s31\ns_add_u32 m0, s25, {c.WB+8192}\ns_mov_b64 exec, 0xffff\nbuffer_load_dwordx4 v5, s[4:7], s30 offen lds\ns_mov_b64 exec, -1\ns_add_u32 s30, s30, {KB}")
            for p,(sr,wh,col) in enumerate(c.panels):
                a(f"s_add_u32 m0, s28, {p*KS*128+kk*4096}")
                o=col+kk*32*c.rowb[wh]; so=f"s{21+wh}"
                if o: a(f"s_add_u32 s25, {so}, {o}"); so="s25"
                a(f"buffer_load_dwordx4 v{2+wh}, s[{sr}:{sr+3}], {so} offen lds")
        for i,rb in enumerate(c.rowb): a(f"s_add_u32 s{21+i}, s{21+i}, {KS*rb}")
        a(f"s_add_u32 s23, s23, {NK*KB}\ns_add_u32 s20, s20, {c.SLOT}\ns_cmp_eq_u32 s20, {R*c.SLOT}\ns_cselect_b32 s20, 0, s20")
    assert P*R<=63
    a(f"s_mov_b32 s24, 0\nPPRO_{name}:"); issue(); a(f"s_add_u32 s24, s24, 1\ns_cmp_lt_u32 s24, {R}\ns_cbranch_scc1 PPRO_{name}")
    a(f"s_waitcnt vmcnt({P*(R-1)})\ns_barrier\ns_waitcnt vmcnt({P*(R-2)})\ns_barrier")
    a(f"PLOOP_{name}:\ns_waitcnt vmcnt({P*(R-3)})\ns_barrier"); issue()
    a(f"s_add_u32 s24, s24, 1\ns_cmp_lt_u32 s24, {NS}\ns_cbranch_scc1 PLOOP_{name}")
    ex=0
    if getattr(c,'ptail_issue',None): ex=c.ptail_issue(a)
    for s in range(NS-R+2,NS): a(f"s_waitcnt vmcnt({min(63,P*(NS-1-s)+ex)})\ns_barrier")
    if getattr(c,'ptail',None): c.ptail(a)
    a("s_endpgm")

def consumer_addr(a,c,blks,atokblk):
    a("v_lshrrev_b32 v2, 2, v0\nv_lshlrev_b32 v3, 7, v2\nv_and_b32 v4, 3, v0\nv_lshl_add_u32 v3, v4, 3, v3\nv_bfe_u32 v2, v0, 3, 2")
    for i,b in enumerate(blks):
        a(f"s_and_b32 s19, {b}, 3\nv_xor_b32 v4, s19, v2\nv_lshl_add_u32 v4, v4, 5, v3\ns_lshr_b32 s19, {b}, 2\ns_mul_i32 s19, s19, {c.KS*128}\nv_add_u32 v{c.vWb+i}, s19, v4")
    a(f"s_lshl_b32 s19, {atokblk}, 10\ns_add_u32 s19, s19, {c.WB}\nv_lshl_add_u32 v{c.vAb}, v0, 4, s19")

def mainloop(a,c,name):
    NK=c.KS//32; NW=len(c.wmap); LA=c.LA; G=NK*NW; NA=c.MI+(1 if c.hal else 0); ring=LA+1
    assert (c.U*G)%ring==0 and (c.U*NK)%2==0 and c.NS%c.U==0 and LA<=NW
    ncls=max(x[0] for x in c.wmap)+1
    Wr=lambda n:c.vWr+4*(n%ring)
    Ar=lambda u,i:c.vAr+4*((u%2)*NA+i)
    def fillers(n,last,upd):
        f=[]; m=n+LA
        if last and m>=c.U*G: return f
        if m%G==0:
            f.append(('x',"s_barrier")); upd.clear()
        kk=(m%G)//NW; j=m%NW; cl,imm=c.wmap[j]
        if ('w',cl) not in upd: upd.add(('w',cl)); f.append(('x',f"v_add_u32 v{c.vW+cl}, s20, v{c.vWb+cl}"))
        f.append(('r',('W',m,0),f"ds_read_b64_tr_b16 {vr(Wr(m),2)}, v{c.vW+cl} offset:{imm+kk*4096}"))
        f.append(('r',('W',m,1),f"ds_read_b64_tr_b16 {vr(Wr(m)+2,2)}, v{c.vW+cl} offset:{imm+kk*4096+2048}"))
        if j<LA:
            u=m//NW
            for i in range(NA):
                if i*LA//NA==j:
                    if 'a' not in upd: upd.add('a'); f.append(('x',f"v_add_u32 v{c.vA}, s20, v{c.vAb}"))
                    off=kk*8192+i*1024 if i<c.MI else c.haloff
                    f.append(('r',('A',u,i),f"ds_read_b128 {vr(Ar(u,i))}, v{c.vA} offset:{off}"))
        if (m+1)%G==0:
            f.append(('x',f"s_add_u32 s20, s20, {c.SLOT}")); f.append(('x',f"s_cmp_eq_u32 s20, {c.R*c.SLOT}")); f.append(('x',"s_cselect_b32 s20, 0, s20"))
        return f
    upd=set(); q0=[]
    a("s_mov_b32 s20, 0")
    for n in range(-LA,0):
        for f in fillers(n,False,upd):
            a(f[-1])
            if f[0]=='r': q0.append(f[1])
    upd0=set(upd)
    def body(last):
        q=list(q0); upd=set(upd0)
        for n in range(c.U*G):
            u=n//NW; j=n%NW
            ms=[]
            for i in range(c.MI):
                acc=c.acc(i,j); x,y=(Ar(u,i),Wr(n)) if j in c.swap else (Wr(n),Ar(u,i))
                ms.append(([('W',n,1),('A',u,i)],f"{MF} {vr(acc)}, {vr(x)}, {vr(y)}, {vr(acc)}"))
            if c.hal and j in c.hal:
                acc,sw=c.hal[j]; x,y=(Ar(u,c.MI),Wr(n)) if sw else (Wr(n),Ar(u,c.MI))
                ms.append(([('W',n,1),('A',u,c.MI)],f"{MF} {vr(acc)}, {vr(x)}, {vr(y)}, {vr(acc)}"))
            fs=fillers(n,last,upd)
            if not last and n==c.U*G-1: fs+= [('x',"s_sub_u32 s24, s24, 1"),('x',"s_cmp_lg_u32 s24, 0")]
            for k,(nd,t) in enumerate(ms):
                pos=max([q.index(x) for x in nd if x in q],default=-1)
                if pos>=0:
                    a(f"s_waitcnt lgkmcnt({min(15,len(q)-1-pos)})"); q=q[pos+1:]
                a(t)
                lo=len(fs)*k//len(ms); hi=len(fs)*(k+1)//len(ms)
                for f in fs[lo:hi]:
                    a(f[-1])
                    if f[0]=='r': q.append(f[1])
    a(f"s_mov_b32 s24, {c.NS//c.U-1}\n.p2align 3\nCL_{name}:"); body(False); a(f"s_cbranch_scc1 CL_{name}"); body(True)

def zero(a,lo,n):
    for i in range(lo,lo+n): a(f"v_mov_b32 v{i}, 0")
C1=-2*0.7978845608028654*1.4426950408889634; C2=C1*0.044715
def gelu_consts(a): a(f"s_mov_b32 s40, {fl(C1)}\ns_mov_b32 s41, {fl(C1)}\ns_mov_b32 s42, {fl(C2)}\ns_mov_b32 s43, {fl(C2)}\nv_mov_b32 v14, s40\nv_mov_b32 v15, s40")
def gelu(a,prs,tmp):
    T=[tmp+2*i for i in range(len(prs))]
    for p,t in zip(prs,T): a(f"v_pk_mul_f32 {vr(t,2)}, {vr(p,2)}, {vr(p,2)}")
    for p,t in zip(prs,T): a(f"v_pk_fma_f32 {vr(t,2)}, {vr(t,2)}, s[42:43], v[14:15]")
    for p,t in zip(prs,T): a(f"v_pk_mul_f32 {vr(t,2)}, {vr(t,2)}, {vr(p,2)}")
    for p,t in zip(prs,T): a(f"v_exp_f32 v{t}, v{t}\nv_exp_f32 v{t+1}, v{t+1}")
    for p,t in zip(prs,T): a(f"v_pk_add_f32 {vr(t,2)}, {vr(t,2)}, 1.0 op_sel_hi:[1,0]")
    for p,t in zip(prs,T): a(f"v_rcp_f32 v{t}, v{t}\nv_rcp_f32 v{t+1}, v{t+1}")
    for p,t in zip(prs,T): a(f"v_pk_mul_f32 {vr(p,2)}, {vr(p,2)}, {vr(t,2)}")
def cvt(a,d,s,n):
    for i in range(n): a(f"v_cvt_pk_bf16_f32 v{d+i}, v{s+2*i}, v{s+2*i+1}")
def kd(name,vg):
    vg=(vg+7)//8*8
    return f""".p2align 6
.amdhsa_kernel {name}
  .amdhsa_next_free_vgpr {vg}
  .amdhsa_next_free_sgpr 96
  .amdhsa_accum_offset {vg}
  .amdhsa_group_segment_fixed_size 0
  .amdhsa_kernarg_size 88
  .amdhsa_user_sgpr_count 2
  .amdhsa_user_sgpr_kernarg_segment_ptr 1
  .amdhsa_system_sgpr_workgroup_id_x 1
.end_amdhsa_kernel
"""
```

```python
from core import *
def red16(a,rs):
    for sh in (8,4,2,1):
        for r in rs: a(f"v_add_f32_dpp v{r}, v{r}, v{r} row_ror:{sh} row_mask:0xf bank_mask:0xf")
def red64(a,rs,t):
    red16(a,rs)
    for sw in ('16','32'):
        for i,r in enumerate(rs): a(f"v_mov_b32 v{t+i}, v{r}")
        for i,r in enumerate(rs): a(f"v_permlane{sw}_swap_b32 v{r}, v{t+i}")
        for i,r in enumerate(rs): a(f"v_add_f32 v{r}, v{r}, v{t+i}")
def unpack(a,d,s,n):
    for i in range(n): a(f"v_and_b32 v{d+2*i+1}, 0xffff0000, v{s+i}\nv_lshlrev_b32 v{d+2*i}, 16, v{s+i}")
def k0():
    a=A(); n="k0_kernel"
    header(a,n,[(8,0),(12,48)],None)
    srd(a,8,4*MB); srd(a,12,1024*7168)
    a("s_lshl_b32 s20, s2, 3\ns_lshl_b32 s19, s16, 1\ns_add_u32 s20, s20, s19\ns_lshl_b32 s21, s20, 11\nv_lshlrev_b32 v2, 4, v0")
    a("s_and_b32 s22, s2, 15\ns_lshr_b32 s23, s2, 4\ns_lshl_b32 s24, s22, 6\ns_lshl_b32 s19, s16, 4\ns_add_u32 s24, s24, s19\ns_mul_i32 s24, s24, 7168\ns_lshl_b32 s19, s23, 9\ns_add_u32 s24, s24, s19")
    a("v_lshrrev_b32 v3, 5, v0\nv_mul_u32_u24 v3, 7168, v3\nv_and_b32 v4, 31, v0\nv_lshl_add_u32 v3, v4, 4, v3")
    a("s_waitcnt lgkmcnt(0)")
    for i in range(4): a(f"buffer_load_dwordx4 {vr(16+4*i)}, v2, s[8:11], s21 offen offset:{i*1024}")
    a("s_cmp_ge_u32 s2, 224\ns_cselect_b32 s14, 0, s14")
    for i in range(8): a(f"buffer_load_dwordx4 {vr(64+4*i)}, v3, s[12:15], s24 offen\ns_add_u32 s24, s24, 14336")
    a("s_waitcnt vmcnt(8)")
    unpack(a,32,16,16)
    for r in range(2):
        b=32+16*r; a(f"v_pk_add_f32 {vr(6+2*r,2)}, {vr(b,2)}, {vr(b+2,2)}")
    for i in range(2,8):
        for r in range(2): a(f"v_pk_add_f32 {vr(6+2*r,2)}, {vr(6+2*r,2)}, {vr(32+16*r+2*i,2)}")
    a("v_add_f32 v6, v6, v7\nv_add_f32 v8, v8, v9"); red64(a,[6,8],10)
    a(f"v_mul_f32 v6, {fl(-1/1024)}, v6\nv_mul_f32 v8, {fl(-1/1024)}, v8")
    for i in range(8):
        for r in range(2): a(f"v_pk_add_f32 {vr(32+16*r+2*i,2)}, {vr(32+16*r+2*i,2)}, {vr(6+2*r,2)} op_sel_hi:[1,0]")
    for r in range(2): a(f"v_pk_mul_f32 {vr(6+2*r,2)}, {vr(32+16*r,2)}, {vr(32+16*r,2)}")
    for i in range(1,8):
        for r in range(2): a(f"v_pk_fma_f32 {vr(6+2*r,2)}, {vr(32+16*r+2*i,2)}, {vr(32+16*r+2*i,2)}, {vr(6+2*r,2)}")
    a("v_add_f32 v6, v6, v7\nv_add_f32 v8, v8, v9"); red64(a,[6,8],10)
    a(f"s_mov_b32 s25, {fl(1e-5)}")
    for r in (6,8): a(f"v_mul_f32 v{r+1}, {fl(1/1024)}, v{r}\nv_add_f32 v{r}, s25, v{r+1}\nv_rsq_f32 v{r}, v{r}")
    for r in (6,8): a(f"v_mul_f32 v{r+1}, v{r+1}, v{r}\nv_fma_f32 v{r+1}, v{r+1}, v{r}, s25\nv_rsq_f32 v{r+1}, v{r+1}")
    for i in range(8):
        for r in range(2): a(f"v_pk_mul_f32 {vr(32+16*r+2*i,2)}, {vr(32+16*r+2*i,2)}, {vr(6+2*r,2)} op_sel_hi:[1,0]")
    cvt(a,16,32,16)
    a("s_mul_i32 s19, s16, 4128\nv_add_u32 v4, s19, v2")
    for i in range(4): a(f"ds_write_b128 v4, {vr(16+4*i)} offset:{(i>>1)*2064+(i&1)*1024}")
    a("s_waitcnt vmcnt(0)")
    a(f"v_mov_b32 v10, v7\nv_mov_b32 v11, v9\ns_lshl_b32 s19, s20, 2\ns_add_u32 s19, s19, {CS}\ns_mov_b64 exec, 1\nbuffer_store_dwordx2 v[10:11], v2, s[4:7], s19 offen\ns_mov_b64 exec, -1")
    unpack(a,32,64,4)
    for i in range(1,8):
        unpack(a,40,64+4*i,4)
        for e in range(4): a(f"v_pk_add_f32 {vr(32+2*e,2)}, {vr(32+2*e,2)}, {vr(40+2*e,2)}")
    a("s_lshl_b32 s19, s16, 11\nv_lshl_add_u32 v4, v0, 5, s19\nds_write_b128 v4, v[32:35] offset:16896\nds_write_b128 v4, v[36:39] offset:16912")
    a("v_and_b32 v5, 7, v0\nv_mul_u32_u24 v4, 2064, v5\nv_bfe_u32 v6, v0, 3, 1\nv_lshl_add_u32 v4, v6, 7, v4\nv_lshrrev_b32 v7, 4, v0\nv_lshl_add_u32 v4, v7, 3, v4\ns_lshl_b32 s19, s16, 9\nv_add_u32 v4, s19, v4")
    a("v_lshlrev_b32 v5, 4, v5\nv_lshl_add_u32 v5, v7, 8, v5\nv_lshl_add_u32 v5, v6, 18, v5")
    a(f"s_lshl_b32 s21, s16, 20\ns_lshr_b32 s19, s2, 1\ns_lshl_b32 s19, s19, 10\ns_add_u32 s21, s21, s19\ns_and_b32 s19, s2, 1\ns_lshl_b32 s19, s19, 7\ns_add_u32 s21, s21, s19")
    a("s_lshl_b32 s19, s16, 8\nv_lshl_add_u32 v8, v0, 2, s19")
    a("s_waitcnt lgkmcnt(0)\ns_barrier")
    for i in range(4):
        o=((i&1)+4*(i>>1))*64
        a(f"ds_read_b64 {vr(16+4*i,2)}, v4 offset:{o}\nds_read_b64 {vr(18+4*i,2)}, v4 offset:{o+32}")
    for i in range(8): a(f"ds_read_b32 v{32+i}, v8 offset:{16896+1024*i}")
    for i in range(4):
        a(f"s_add_u32 s19, s21, {XN+((i&1)+4*(i>>1))*KB}\ns_waitcnt lgkmcnt({14-2*i})\nbuffer_store_dwordx4 {vr(16+4*i)}, v5, s[4:7], s19 offen")
    a(f"s_cmp_ge_u32 s2, 224\ns_cbranch_scc1 END_{n}\ns_waitcnt lgkmcnt(0)")
    for i in range(1,8): a(f"v_add_f32 v32, v32, v{32+i}")
    a(f"s_mul_i32 s19, s22, 14336\ns_lshl_b32 s23, s23, 10\ns_add_u32 s19, s19, s23\ns_add_u32 s19, s19, {CSUM}\nbuffer_store_dword v32, v8, s[4:7], s19 offen")
    a(f"END_{n}:\ns_endpgm")
    return n,a.text(),96,256,25600

def k1():
    a=A(); n="k1_kernel"; c=Cfg()
    c.KS=32;c.R=6;c.NS=32;c.WB=16384;c.SLOT=25600;c.halo=True
    c.rowb=[6144,2048]; c.panels=[(8,0,0),(8,0,2048),(8,0,4096),(12,1,0)]
    EX=c.R*c.SLOT
    header(a,n,[(8,8),(12,32)],'8x4')
    srd(a,8,1024*6144); srd(a,12,2*MB)
    a(f"s_cmp_lt_u32 s16, 4\ns_cbranch_scc1 CONS_{n}")
    a(f"s_lshl_b32 s21, s18, 7\ns_mov_b32 s22, s21\ns_lshl_b32 s23, s17, 13\ns_sub_u32 s30, s23, 1024\ns_max_i32 s30, s30, 0\ns_waitcnt lgkmcnt(0)")
    producer(a,c,n)
    a(f"CONS_{n}:")
    a("s_lshr_b32 s32, s16, 1\ns_and_b32 s33, s16, 1\ns_lshl_b32 s34, s33, 1\ns_add_u32 s35, s34, 1\ns_lshl_b32 s36, s32, 2")
    c.vWb=16;c.vW=18;c.vAb=20;c.vA=21;c.vWr=24;c.vAr=40
    ACC=80; HAL=208; CC=216; MK=224
    consumer_addr(a,c,['s34','s35'],'s36')
    c.wmap=[(j&1,(j>>1)*4096) for j in range(8)]; c.MI=4;c.LA=3;c.U=2;c.swap={4,5}
    c.acc=lambda i,j:ACC+32*i+4*j
    a(f"s_lshl_b32 s37, s17, 7\ns_lshl_b32 s19, s32, 6\ns_add_u32 s37, s37, s19\nv_and_b32 v2, 15, v0\nv_lshlrev_b32 v3, 2, v2\ns_lshl_b32 s19, s37, 2\ns_add_u32 s19, s19, {CS}\ns_waitcnt lgkmcnt(0)")
    for i in range(4): a(f"buffer_load_dword v{CC+2*i}, v3, s[4:7], s19 offen offset:{64*i}")
    a(f"v_lshrrev_b32 v3, 4, v0\nv_lshlrev_b32 v3, 2, v3\nv_sub_u32 v3, v2, v3\nv_mov_b32 v5, {fl(-1e30)}")
    for e in range(4):
        for h in range(2):
            a(f"v_add_u32 v4, {16-16*h-e}, v3\nv_and_b32 v4, 0xfffffff1, v4\nv_cmp_eq_u32 vcc, 0, v4\nv_cndmask_b32 v{MK+4*h+e}, v5, 0, vcc")
    a("s_cmp_eq_u32 s37, 0\ns_cselect_b64 vcc, -1, 0")
    for e in range(4): a(f"v_cndmask_b32 v{MK+8+e}, v{MK+e}, v5, vcc")
    zero(a,ACC,136); gelu_consts(a)
    a(f"s_cmp_eq_u32 s32, 1\ns_cbranch_scc1 C1_{n}")
    for wm in range(2):
        if wm: a(f"C1_{n}:")
        c.hal={2:(HAL,False),3:(HAL+4,False)} if wm==0 else {4:(HAL,True),5:(HAL+4,True)}
        c.haloff=8192-4096*wm
        mainloop(a,c,n+str(wm))
        Q=lambda i:24+4*i; K=lambda i:44+4*i; V=lambda d,i:62+10*d+2*i
        a(f"s_mul_i32 s19, s33, 3072\ns_add_u32 s19, s19, {EX}\nv_lshl_add_u32 v2, v0, 4, s19")
        if wm==0:
            cvt(a,K(3),c.acc(3,2),4); cvt(a,4,c.acc(3,4),4)
            a(f"ds_write_b128 v2, {vr(K(3))}\nds_write_b128 v2, v[4:7] offset:1024")
            cvt(a,K(-1),HAL,4)
        else:
            cvt(a,4,HAL,4); a("ds_write_b128 v2, v[4:7] offset:2048"); cvt(a,K(3),c.acc(3,2),4)
        for i in range(4):
            cvt(a,Q(i),c.acc(i,0),4)
            if i<3: cvt(a,K(i),c.acc(i,2),4)
            for d in range(2): cvt(a,V(d,i),c.acc(i,4+d),2)
        a("s_waitcnt lgkmcnt(0)\ns_barrier")
        if wm==0: a(f"ds_read_b64 {vr(V(0,-1),2)}, v2 offset:2048\nds_read_b64 {vr(V(1,-1),2)}, v2 offset:2056")
        else: a(f"ds_read_b128 {vr(K(-1))}, v2\nds_read_b64 {vr(V(0,-1),2)}, v2 offset:1024\nds_read_b64 {vr(V(1,-1),2)}, v2 offset:1032")
        S=lambda i:c.acc(i,0)
        T=lambda i:c.acc(i,2)
        for i in (3,2,1,0):
            a(f"{MF} {vr(S(i)+4)}, {vr(K(i))}, {vr(Q(i))}, {vr(MK+4)}")
            if i==0: a("s_waitcnt lgkmcnt(0)")
            a(f"{MF} {vr(S(i))}, {vr(K(i-1))}, {vr(Q(i))}, {vr(MK+8 if i==0 else MK)}")
        a("s_waitcnt vmcnt(0)")
        for i in range(4):
            for e in range(4): a(f"v_pk_mul_f32 {vr(c.acc(i,6)+2*e,2)}, {vr(c.acc(i,6)+2*e,2)}, {vr(CC+2*i,2)} op_sel_hi:[1,0]")
        I=(3,2,1,0)
        for i in I: a(f"v_max3_f32 v{T(i)}, v{S(i)}, v{S(i)+1}, v{S(i)+2}\nv_max3_f32 v{T(i)+1}, v{S(i)+3}, v{S(i)+4}, v{S(i)+5}")
        for i in I: a(f"v_max3_f32 v{T(i)}, v{T(i)}, v{S(i)+6}, v{S(i)+7}")
        for i in I: a(f"v_max_f32 v{T(i)}, v{T(i)}, v{T(i)+1}")
        def xred(op):
            for sw in ('16','32'):
                for i in I: a(f"v_mov_b32 v{T(i)+1}, v{T(i)}")
                for i in I: a(f"v_permlane{sw}_swap_b32 v{T(i)}, v{T(i)+1}")
                for i in I: a(f"{op} v{T(i)}, v{T(i)}, v{T(i)+1}")
        xred("v_max_f32")
        sc=32**-0.5*1.4426950408889634
        a(f"s_mov_b32 s44, {fl(sc)}\ns_mov_b32 s45, {fl(sc)}")
        for i in I: a(f"v_mul_f32 v{T(i)}, {fl(-sc)}, v{T(i)}")
        for i in I:
            for e in range(4): a(f"v_pk_fma_f32 {vr(S(i)+2*e,2)}, {vr(S(i)+2*e,2)}, s[44:45], {vr(T(i),2)} op_sel_hi:[1,1,0]")
        for i in I:
            for e in range(8): a(f"v_exp_f32 v{S(i)+e}, v{S(i)+e}")
        for i in I: a(f"v_pk_add_f32 {vr(T(i),2)}, {vr(S(i),2)}, {vr(S(i)+2,2)}\nv_pk_add_f32 {vr(T(i)+2,2)}, {vr(S(i)+4,2)}, {vr(S(i)+6,2)}")
        for i in I: a(f"v_pk_add_f32 {vr(T(i),2)}, {vr(T(i),2)}, {vr(T(i)+2,2)}")
        for i in I: a(f"v_add_f32 v{T(i)}, v{T(i)}, v{T(i)+1}")
        xred("v_add_f32")
        for i in I: a(f"v_rcp_f32 v{T(i)}, v{T(i)}")
        for i in I:
            for e in range(4): a(f"v_pk_mul_f32 {vr(S(i)+2*e,2)}, {vr(S(i)+2*e,2)}, {vr(T(i),2)} op_sel_hi:[1,0]")
        for i in I: cvt(a,Q(i),S(i),4)
        for i in I:
            for d in range(2): a(f"{MF} {vr(S(i)+4*d)}, {vr(V(d,i-1))}, {vr(Q(i))}, 0")
        a(f"s_lshl_b32 s38, s18, 1\ns_add_u32 s38, s38, s33\ns_lshl_b32 s39, s38, 17\ns_lshl_b32 s19, s37, 6\ns_add_u32 s46, s39, s19\ns_add_u32 s46, s46, {OO}\ns_add_u32 s39, s39, {HS}\nv_lshlrev_b32 v2, 4, v0")
        a("s_lshr_b32 s19, s38, 4\ns_add_u32 s19, s19, 1\ns_sub_u32 s47, 0, s19\ns_bitcmp1_b32 s38, 3\ns_cselect_b32 s19, s47, s19\ns_add_u32 s19, s19, s37")
        a("v_and_b32 v3, 15, v0\nv_add_u32 v3, s19, v3\nv_and_b32 v4, 48, v0\nv_lshlrev_b32 v4, 4, v4")
        gelu(a,[c.acc(3,6)+2*e for e in range(4)]+[c.acc(2,6)+2*e for e in range(4)],40)
        for i in I:
            cvt(a,Q(i),S(i),4); a(f"buffer_store_dwordx4 {vr(Q(i))}, v2, s[4:7], s46 offen offset:{1024*i}")
        def hstore(i):
            cvt(a,T(i),c.acc(i,6),4)
            a(f"v_add_u32 v5, {16*i}, v3\nv_and_b32 v6, 0x7ff, v5\nv_cmp_eq_u32 vcc, v5, v6\nv_lshrrev_b32 v7, 4, v6\nv_and_b32 v6, 15, v6\nv_lshl_add_u32 v6, v6, 4, v4\nv_lshl_add_u32 v{8+i}, v7, 10, v6")
            if (wm==0 and i==0) or (wm==1 and i==3):
                for e in range(4): a(f"v_cndmask_b32 v{T(i)+e}, 0, v{T(i)+e}, vcc")
            a(f"buffer_store_dwordx4 {vr(T(i))}, v{8+i}, s[4:7], s39 offen")
        hstore(3); hstore(2)
        gelu(a,[c.acc(1,6)+2*e for e in range(4)]+[c.acc(0,6)+2*e for e in range(4)],40)
        hstore(1); hstore(0)
        a("s_endpgm")
    a(f"END_{n}:\ns_endpgm")
    return n,a.text(),240,512,EX+6144
```

```python
from core import *
from k01 import unpack
def addres(a,acc,res,t):
    unpack(a,t,res,4)
    for e in range(4): a(f"v_pk_add_f32 {vr(acc+2*e,2)}, {vr(acc+2*e,2)}, {vr(t+2*e,2)}")
def rowmaj_off(a,d):
    a(f"v_and_b32 v{d}, 15, v0\nv_lshlrev_b32 v{d}, 11, v{d}\nv_bfe_u32 v1, v0, 4, 1\nv_lshl_add_u32 v{d}, v1, 5, v{d}\nv_lshrrev_b32 v1, 5, v0\nv_lshl_add_u32 v{d}, v1, 4, v{d}")
def k2():
    a=A(); n="k2_kernel"; c=Cfg()
    c.KS=32;c.R=9;c.NS=32;c.WB=8192;c.SLOT=16384;c.halo=False
    c.rowb=[2048]; c.panels=[(8,0,0),(8,0,128)]
    header(a,n,[(8,40),(48,16),(12,0)],'8x4')
    srd(a,8,2*MB); srd(a,12,4*MB)
    a("s_lshr_b32 s50, s18, 3\ns_and_b32 s18, s18, 7")
    a(f"s_cmp_lt_u32 s16, 4\ns_cbranch_scc1 CONS_{n}")
    a(f"s_lshl_b32 s21, s18, 8\ns_lshl_b32 s23, s17, 13\ns_lshl_b32 s19, s50, 22\ns_add_u32 s23, s23, s19\ns_add_u32 s23, s23, {HS}\ns_waitcnt lgkmcnt(0)")
    a("s_cmp_eq_u32 s50, 1\ns_cselect_b32 s8, s48, s8\ns_cselect_b32 s9, s49, s9")
    producer(a,c,n)
    a(f"CONS_{n}:")
    a("s_lshr_b32 s32, s16, 1\ns_and_b32 s33, s16, 1\ns_lshl_b32 s34, s33, 2\ns_add_u32 s35, s34, 1\ns_add_u32 s36, s34, 2\ns_add_u32 s37, s34, 3\ns_lshl_b32 s38, s32, 2")
    c.vWb=16;c.vW=20;c.vAb=24;c.vA=25;c.vWr=28;c.vAr=44
    ACC=76; RES=140
    consumer_addr(a,c,['s34','s35','s36','s37'],'s38')
    c.wmap=[(j,0) for j in range(4)]; c.MI=4;c.LA=3;c.U=2;c.swap=set();c.hal=None
    c.acc=lambda i,j:ACC+16*i+4*j
    a("s_lshl_b32 s37, s17, 7\ns_lshl_b32 s19, s32, 6\ns_add_u32 s37, s37, s19\ns_lshl_b32 s36, s18, 1\ns_add_u32 s36, s36, s33\ns_lshl_b32 s39, s36, 18\ns_lshl_b32 s19, s37, 6\ns_add_u32 s39, s39, s19\nv_lshlrev_b32 v2, 4, v0")
    rowmaj_off(a,3)
    a(f"s_waitcnt lgkmcnt(0)\ns_cmp_eq_u32 s50, 1\ns_cbranch_scc1 RL_{n}")
    a(f"s_add_u32 s19, s39, {KB}")
    for i in range(4):
        for p in range(2): a(f"buffer_load_dwordx4 {vr(RES+8*i+4*p)}, v2, s[4:7], {'s19' if p else 's39'} offen offset:{1024*i}")
    a(f"s_branch RD_{n}\nRL_{n}:\ns_lshl_b32 s19, s37, 11\ns_lshl_b32 s35, s36, 7\ns_add_u32 s19, s19, s35")
    for i in range(4):
        for p in range(2): a(f"buffer_load_dwordx4 {vr(RES+8*i+4*p)}, v3, s[12:15], s19 offen offset:{64*p}")
        a("s_add_u32 s19, s19, 32768")
    a(f"RD_{n}:")
    zero(a,ACC,64)
    mainloop(a,c,n)
    a(f"s_waitcnt vmcnt(0)\ns_lshl_b32 s19, s50, 22\ns_add_u32 s39, s39, s19\ns_add_u32 s39, s39, {X1}\ns_add_u32 s38, s39, {KB}\ns_cmp_eq_u32 s50, 0\ns_cbranch_scc1 NS_{n}")
    for q in range(8): a(f"v_permlane16_swap_b32 v{RES+4*q}, v{RES+4*q+2}\nv_permlane16_swap_b32 v{RES+4*q+1}, v{RES+4*q+3}")
    a(f"NS_{n}:")
    for i in range(4):
        for p in range(2):
            addres(a,c.acc(i,2*p),RES+8*i+4*p,28+8*p)
            cvt(a,RES+8*i+4*p,c.acc(i,2*p),4)
            a(f"buffer_store_dwordx4 {vr(RES+8*i+4*p)}, v2, s[4:7], {'s38' if p else 's39'} offen offset:{1024*i}")
    a(f"s_cbranch_scc0 END_{n}")
    SU=lambda i:44+4*i; SQ=lambda i:46+4*i
    for i in range(4): a(f"v_pk_add_f32 {vr(SU(i),2)}, {vr(c.acc(i,0),2)}, {vr(c.acc(i,0)+2,2)}\nv_pk_mul_f32 {vr(SQ(i),2)}, {vr(c.acc(i,0),2)}, {vr(c.acc(i,0),2)}")
    for e in range(1,8):
        for i in range(4):
            x=vr(c.acc(i,0)+2*e,2)
            if e>1: a(f"v_pk_add_f32 {vr(SU(i),2)}, {vr(SU(i),2)}, {x}")
            a(f"v_pk_fma_f32 {vr(SQ(i),2)}, {x}, {x}, {vr(SQ(i),2)}")
    for i in range(4): a(f"v_add_f32 v{SU(i)}, v{SU(i)}, v{SU(i)+1}\nv_add_f32 v{SQ(i)}, v{SQ(i)}, v{SQ(i)+1}")
    for F in (SU,SQ): a(f"v_permlane16_swap_b32 v{F(0)}, v{F(1)}\nv_permlane16_swap_b32 v{F(2)}, v{F(3)}")
    for F in (SU,SQ): a(f"v_add_f32 v{F(0)}, v{F(0)}, v{F(1)}\nv_add_f32 v{F(2)}, v{F(2)}, v{F(3)}")
    for F in (SU,SQ): a(f"v_permlane32_swap_b32 v{F(0)}, v{F(2)}")
    a(f"v_add_f32 v4, v{SU(0)}, v{SU(2)}\nv_add_f32 v5, v{SQ(0)}, v{SQ(2)}\nv_lshlrev_b32 v2, 3, v0\ns_lshl_b32 s19, s36, 14\ns_lshl_b32 s37, s37, 3\ns_add_u32 s19, s19, s37\ns_add_u32 s19, s19, {ST}\nbuffer_store_dwordx2 v[4:5], v2, s[4:7], s19 offen")
    a(f"END_{n}:\ns_endpgm")
    return n,a.text(),176,512,c.R*c.SLOT

def k3():
    a=A(); n="k3_kernel"; c=Cfg()
    c.KS=32;c.R=6;c.NS=32;c.WB=16384;c.SLOT=24576;c.halo=False
    c.rowb=[7168]; c.panels=[(8,0,128*p) for p in range(4)]
    EX=c.R*c.SLOT
    header(a,n,[(8,48)],'8x4')
    srd(a,8,1024*7168)
    a(f"s_cmp_lt_u32 s16, 4\ns_cbranch_scc1 CONS_{n}")
    a(f"s_mul_i32 s21, s18, 448\ns_and_b32 s21, s21, 0xffffff80\ns_lshl_b32 s23, s17, 13\ns_add_u32 s23, s23, {X1}\ns_waitcnt lgkmcnt(0)")
    def pti(a):
        a(f"v_lshl_add_u32 v10, v0, 2, s31\ns_mul_i32 s19, s18, 896\ns_add_u32 s19, s19, {CSUM}")
        for i in range(16): a(f"buffer_load_dword v{16+i}, v10, s[4:7], s19 offen\ns_add_u32 s19, s19, 14336")
        a(f"v_and_b32 v11, 31, v0\nv_lshlrev_b32 v11, 3, v11\nv_add_u32 v12, s31, v11\nv_lshrrev_b32 v11, 5, v0\nv_lshl_add_u32 v11, v11, 17, v12\ns_lshl_b32 s19, s17, 10\ns_add_u32 s19, s19, {ST}")
        for i in range(8): a(f"buffer_load_dwordx2 {vr(32+2*i,2)}, v11, s[4:7], s19 offen\ns_add_u32 s19, s19, 16384")
        return 24
    def pt(a):
        a("s_waitcnt vmcnt(0)")
        for i in range(1,8): a(f"v_pk_add_f32 v[16:17], v[16:17], {vr(16+2*i,2)}\nv_pk_add_f32 v[32:33], v[32:33], {vr(32+2*i,2)}")
        a(f"v_add_f32 v16, v16, v17\nv_mov_b32 v34, v32\nv_mov_b32 v35, v33\nv_add_u32 v10, {EX}, v10\nds_write_b32 v10, v16")
        a("v_permlane32_swap_b32 v32, v34\nv_permlane32_swap_b32 v33, v35\nv_add_f32 v32, v32, v34\nv_add_f32 v33, v33, v35")
        a(f"v_mul_f32 v32, {fl(-1/1024)}, v32\nv_mul_f32 v33, {fl(1/1024)}, v33\nv_fma_f32 v33, -v32, v32, v33\nv_max_f32 v33, 0, v33\nv_add_f32 v33, {fl(1e-5)}, v33\nv_rsq_f32 v33, v33\nv_add_u32 v12, {EX+1024}, v12\nds_write_b64 v12, v[32:33]\ns_waitcnt lgkmcnt(0)\ns_barrier")
    c.ptail_issue=pti; c.ptail=pt
    producer(a,c,n)
    a(f"CONS_{n}:")
    a("s_lshr_b32 s32, s16, 1\ns_and_b32 s33, s16, 1\ns_and_b32 s19, s18, 1\ns_lshl_b32 s19, s19, 1\ns_lshl_b32 s34, s33, 3\ns_add_u32 s34, s34, s19\ns_add_u32 s35, s34, 1\ns_add_u32 s36, s34, 2\ns_add_u32 s37, s34, 3\ns_add_u32 s38, s19, s33\ns_add_u32 s38, s38, 6\ns_lshl_b32 s39, s32, 2")
    c.vWb=16;c.vW=21;c.vAb=26;c.vA=27;c.vWr=28;c.vAr=44
    ACC=76
    consumer_addr(a,c,['s34','s35','s36','s37','s38'],'s39')
    c.wmap=[(0,0),(1,0),(2,0),(3,0),(0,4096),(1,4096),(4,0)]; c.MI=4;c.LA=3;c.U=4;c.swap=set();c.hal=None
    c.acc=lambda i,j:ACC+28*i+4*j
    zero(a,ACC,112); gelu_consts(a)
    a("s_waitcnt lgkmcnt(0)")
    mainloop(a,c,n)
    CSR=188; STR=216; PK=224
    a(f"v_and_b32 v2, 48, v0\ns_lshl_b32 s19, s33, 9\ns_add_u32 s19, s19, {EX}\nv_add_u32 v3, s19, v2\ns_lshl_b32 s19, s33, 6\ns_add_u32 s19, s19, {EX+384}\nv_add_u32 v4, s19, v2")
    a(f"v_and_b32 v5, 15, v0\ns_lshl_b32 s19, s32, 9\ns_add_u32 s19, s19, {EX+1024}\nv_lshl_add_u32 v5, v5, 3, s19\ns_barrier")
    for i in range(4): a(f"ds_read_b64 {vr(STR+2*i,2)}, v5 offset:{128*i}")
    for j in range(6): a(f"ds_read_b128 {vr(CSR+4*j)}, v3 offset:{64*j}")
    a(f"ds_read_b128 {vr(CSR+24)}, v4")
    a(f"s_mul_i32 s34, s18, {7*KB}\ns_lshl_b32 s19, s17, 13\ns_add_u32 s34, s34, s19\ns_lshl_b32 s19, s32, 12\ns_add_u32 s34, s34, s19\ns_add_u32 s34, s34, {GG}")
    a(f"s_lshl_b32 s19, s33, 3\ns_add_u32 s38, s34, s19\ns_add_u32 s38, s38, {3*KB}\ns_lshl_b32 s19, s33, 19\ns_add_u32 s34, s34, s19\ns_add_u32 s35, s34, {KB}\ns_add_u32 s36, s34, {2*KB}\nv_lshlrev_b32 v2, 4, v0\ns_waitcnt lgkmcnt(0)")
    for i in range(4):
        prs=[c.acc(i,0)+2*e for e in range(14)]
        for e,p in enumerate(prs): a(f"v_pk_fma_f32 {vr(p,2)}, {vr(CSR+2*e,2)}, {vr(STR+2*i,2)}, {vr(p,2)} op_sel_hi:[1,0,1]")
        for e,p in enumerate(prs): a(f"v_pk_mul_f32 {vr(p,2)}, {vr(p,2)}, {vr(STR+2*i,2)} op_sel:[0,1] op_sel_hi:[1,1]")
        gelu(a,prs,28)
        pk=PK+16*(i&1)
        cvt(a,pk,c.acc(i,0),14)
        for p in range(3): a(f"buffer_store_dwordx4 {vr(pk+4*p)}, v2, s[4:7], s{34+p} offen offset:{1024*i}")
        a(f"buffer_store_dwordx2 {vr(pk+12,2)}, v2, s[4:7], s38 offen offset:{1024*i}")
    a(f"END_{n}:\ns_endpgm")
    return n,a.text(),256,512,EX+2048

def k4():
    a=A(); n="k4_kernel"; c=Cfg()
    c.KS=64;c.R=6;c.NS=56;c.WB=8192;c.SLOT=24576;c.halo=False
    c.rowb=[2048]; c.panels=[(8,0,0)]
    header(a,n,[(8,56),(12,64)],'4x8')
    srd(a,8,3584*2048); srd(a,12,4*MB)
    a(f"s_cmp_lt_u32 s16, 4\ns_cbranch_scc1 CONS_{n}")
    a(f"s_lshl_b32 s21, s18, 7\ns_lshl_b32 s23, s17, 13\ns_add_u32 s23, s23, {GG}\ns_waitcnt lgkmcnt(0)")
    producer(a,c,n)
    a(f"CONS_{n}:")
    a("s_lshl_b32 s38, s16, 1")
    c.vWb=16;c.vW=20;c.vAb=24;c.vA=25;c.vWr=28;c.vAr=44
    ACC=60; RES=92
    consumer_addr(a,c,[0,1,2,3],'s38')
    c.wmap=[(j,0) for j in range(4)]; c.MI=2;c.LA=3;c.U=1;c.swap=set();c.hal=None
    c.acc=lambda i,j:ACC+16*i+4*j
    a(f"s_lshl_b32 s37, s17, 7\ns_lshl_b32 s19, s16, 5\ns_add_u32 s37, s37, s19\ns_lshl_b32 s39, s18, 18\ns_lshl_b32 s19, s37, 6\ns_add_u32 s39, s39, s19\nv_lshlrev_b32 v2, 4, v0\ns_waitcnt lgkmcnt(0)")
    for r,base in enumerate((X1,RR)):
        for p in range(2):
            a(f"s_add_u32 s19, s39, {base+p*KB}")
            for i in range(2): a(f"buffer_load_dwordx4 {vr(RES+16*r+8*i+4*p)}, v2, s[4:7], s19 offen offset:{1024*i}")
    rowmaj_off(a,3)
    zero(a,ACC,32)
    mainloop(a,c,n)
    a("s_waitcnt vmcnt(0)\ns_lshl_b32 s19, s37, 11\ns_lshl_b32 s35, s18, 7\ns_add_u32 s19, s19, s35")
    for i in range(2):
        for p in range(2):
            q=RES+8*i+4*p
            addres(a,c.acc(i,2*p),q,28); addres(a,c.acc(i,2*p),q+16,36)
            cvt(a,q,c.acc(i,2*p),4)
            a(f"v_permlane16_swap_b32 v{q}, v{q+2}\nv_permlane16_swap_b32 v{q+1}, v{q+3}")
            a(f"buffer_store_dwordx4 {vr(q)}, v3, s[12:15], s19 offen offset:{64*p}")
        a("s_add_u32 s19, s19, 32768")
    a(f"END_{n}:\ns_endpgm")
    return n,a.text(),128,512,c.R*c.SLOT
```

```python
import sys
from k01 import *
from k234 import *
NAME="parallel_sum__sliding_local_dilated__mixer_s_mlp__prompt"
def build(ks,out,extra=[]):
    ref=open(f"cdna_kernels/{NAME}.s.ref").read().split("\n")
    s="\n".join(l for l in ref if l.startswith(";") and "@launch" not in l)+"\n"
    for n,t,vg,bl,lds in ks: s+=f"; @launch kernel={n} grid=(256,1,1) block=({bl},1,1) lds={lds}\n"
    s+='.amdgcn_target "amdgcn-amd-amdhsa--gfx950"\n.text\n'
    seen=set()
    for n,t,vg,bl,lds in ks:
        if n not in seen: s+=t; seen.add(n)
    s+='.section .rodata,"a"\n'; seen=set()
    for n,t,vg,bl,lds in ks:
        if n not in seen: s+=kd(n,vg); seen.add(n)
    open(out,"w").write(s)
if __name__=="__main__":
    build([k0(),k1(),k2(),k3(),k4()],sys.argv[1] if len(sys.argv)>1 else f"cdna_kernels/{NAME}.s")
```

```python
from asmlib import *
MB=1<<20
XN,HS,OO,X1,RR,GG=0,4*MB,8*MB,12*MB,16*MB,20*MB
CS=36*MB; CSUM=36*MB+65536; ST=37*MB; WSZ=38*MB
KB=131072
MF="v_mfma_f32_16x16x32_bf16"
import os
PROF=int(os.environ.get('PROF','0'))
PRF=37*MB+512*1024
def stamp(a,i,real=False):
    if PROF:
        a(f"s_mem{'real' if real or PROF>1 else ''}time s[98:99]\ns_waitcnt lgkmcnt(0)\ns_mov_b32 s{82+i}, s98")
def stamp_end(a,w):
    if PROF:
        a("s_waitcnt vmcnt(0)"); stamp(a,13); stamp(a,15,True)
        for i in range(16): a(f"v_mov_b32 v{4+i}, s{82+i}")
        a(f"s_lshl_b32 s19, s2, 9\ns_lshl_b32 s20, s16, 6\ns_add_u32 s19, s19, s20\ns_add_u32 s19, s19, {PRF+w*256}\nv_mov_b32 v1, 0\ns_mov_b64 exec, 1")
        for i in range(4): a(f"buffer_store_dwordx4 {vr(4+4*i)}, v1, s[4:7], s19 offen offset:{16*i}")
def header(a,name,ptrs,mapping):
    a(f".globl {name}\n.p2align 8\n.type {name},@function\n{name}:")
    a(f"s_cmp_ge_u32 s2, 256\ns_cbranch_scc1 END_{name}")
    stamp(a,0,True)
    a("s_load_dwordx2 s[4:5], s[0:1], 80")
    for r,o in ptrs: a(f"s_load_dwordx2 s[{r}:{r+1}], s[0:1], {o}")
    a("v_lshrrev_b32 v1, 6, v0\nv_and_b32 v0, 63, v0\nv_readfirstlane_b32 s16, v1")
    if mapping=='8x4':
        a("s_and_b32 s17, s2, 1\ns_lshl_b32 s17, s17, 3\ns_bfe_u32 s19, s2, 0x30003\ns_add_u32 s17, s17, s19")
        a("s_bfe_u32 s18, s2, 0x20001\ns_lshl_b32 s18, s18, 2\ns_lshr_b32 s19, s2, 6\ns_add_u32 s18, s18, s19")
    elif mapping=='4x8':
        a("s_and_b32 s17, s2, 3\ns_lshl_b32 s17, s17, 2\ns_bfe_u32 s19, s2, 0x20003\ns_add_u32 s17, s17, s19")
        a("s_bfe_u32 s18, s2, 0x10002\ns_lshl_b32 s18, s18, 3\ns_lshr_b32 s19, s2, 5\ns_add_u32 s18, s18, s19")
    a(f"s_mov_b32 s6, {WSZ}\ns_mov_b32 s7, 0x20000")
def srd(a,r,size): a(f"s_mov_b32 s{r+2}, {size}\ns_mov_b32 s{r+3}, 0x20000")

class Cfg: pass
def producer(a,c,name):
    KS,R,NS=c.KS,c.R,c.NS; NK=KS//32
    a("s_setprio 1\ns_sub_u32 s16, s16, 4")
    a("v_lshrrev_b32 v6, 3, v0\ns_lshl_b32 s19, s16, 3\nv_add_u32 v6, s19, v6")
    a("v_lshrrev_b32 v7, 4, v0\nv_lshlrev_b32 v7, 1, v7\nv_and_b32 v8, 7, v0\nv_xor_b32 v7, v7, v8\nv_lshlrev_b32 v7, 4, v7")
    for i,rb in enumerate(c.rowb): a(f"s_mov_b32 s19, {rb}\nv_mad_u32_u24 v{2+i}, v6, s19, v7")
    a("s_lshl_b32 s26, s16, 10\ns_lshl_b32 s27, s16, 11\ns_lshl_b32 s31, s16, 8\nv_lshlrev_b32 v6, 4, v0\nv_add_u32 v4, s27, v6\nv_add_u32 v5, s31, v6")
    a("s_mov_b32 s20, 0")
    P=len(c.panels)*NK+2*NK+(1 if c.halo else 0)
    def issue():
        a(f"s_add_u32 s28, s20, s26\ns_add_u32 s29, s20, s27")
        for kk in range(NK):
            a(f"s_add_u32 m0, s29, {c.WB+kk*8192}")
            so="s23"
            if kk: a(f"s_add_u32 s25, s23, {kk*KB}"); so="s25"
            a(f"buffer_load_dwordx4 v4, s[4:7], {so} offen lds\nbuffer_load_dwordx4 v4, s[4:7], {so} offen offset:1024 lds")
            if c.halo:
                a(f"s_add_u32 s25, s20, s31\ns_add_u32 m0, s25, {c.WB+8192}\ns_mov_b64 exec, 0xffff\nbuffer_load_dwordx4 v5, s[4:7], s30 offen lds\ns_mov_b64 exec, -1\ns_add_u32 s30, s30, {KB}")
            for p,(sr,wh,col) in enumerate(c.panels):
                a(f"s_add_u32 m0, s28, {p*KS*128+kk*4096}")
                o=col+kk*32*c.rowb[wh]; so=f"s{21+wh}"
                if o: a(f"s_add_u32 s25, {so}, {o}"); so="s25"
                a(f"buffer_load_dwordx4 v{2+wh}, s[{sr}:{sr+3}], {so} offen lds")
        for i,rb in enumerate(c.rowb): a(f"s_add_u32 s{21+i}, s{21+i}, {KS*rb}")
        a(f"s_add_u32 s23, s23, {NK*KB}\ns_add_u32 s20, s20, {c.SLOT}\ns_cmp_eq_u32 s20, {R*c.SLOT}\ns_cselect_b32 s20, 0, s20")
    assert P*R<=63
    a(f"s_mov_b32 s24, 0\nPPRO_{name}:"); issue(); a(f"s_add_u32 s24, s24, 1\ns_cmp_lt_u32 s24, {R}\ns_cbranch_scc1 PPRO_{name}")
    a(f"s_waitcnt vmcnt({P*(R-1)})\ns_barrier\ns_waitcnt vmcnt({P*(R-2)})\ns_barrier")
    a(f"PLOOP_{name}:\ns_waitcnt vmcnt({P*(R-3)})\ns_barrier"); issue()
    a(f"s_add_u32 s24, s24, 1\ns_cmp_lt_u32 s24, {NS}\ns_cbranch_scc1 PLOOP_{name}")
    ex=0
    if getattr(c,'ptail_issue',None): ex=c.ptail_issue(a)
    for s in range(NS-R+2,NS): a(f"s_waitcnt vmcnt({min(63,P*(NS-1-s)+ex)})\ns_barrier")
    if getattr(c,'ptail',None): c.ptail(a)
    a("s_endpgm")

def consumer_addr(a,c,blks,atokblk):
    a("v_lshrrev_b32 v2, 2, v0")
    if hasattr(c,'sadv'): a("v_lshrrev_b32 v3, 4, v0\nv_lshl_add_u32 v2, v3, 2, v2")
    a("v_lshlrev_b32 v3, 7, v2\nv_and_b32 v4, 3, v0\nv_lshl_add_u32 v3, v4, 3, v3\nv_bfe_u32 v2, v0, 3, 2")
    for i,b in enumerate(blks):
        a(f"s_and_b32 s19, {b}, 3\nv_xor_b32 v4, s19, v2\nv_lshl_add_u32 v4, v4, 5, v3\ns_lshr_b32 s19, {b}, 2\ns_mul_i32 s19, s19, {c.KS*128}\nv_add_u32 v{c.vWb+i}, s19, v4")
    a(f"s_lshl_b32 s19, {atokblk}, 10\ns_add_u32 s19, s19, {c.WB}\nv_lshl_add_u32 v{c.vAb}, v0, 4, s19")

def mainloop(a,c,name,segs=None,st=None):
    NK=c.KS//32; NW=len(c.wmap); LA=c.LA; G=NK*NW; NA=c.MI+(1 if c.hal else 0); ring=LA+1
    assert (c.U*G)%ring==0 and (c.U*NK)%2==0 and c.NS%c.U==0 and LA<=NW
    Wr=lambda n:c.vWr+4*(n%ring)
    Ar=lambda u,i:c.vAr+4*((u%2)*NA+i)
    w2=getattr(c,'w2off',2048)
    aupd=getattr(c,'aupd',lambda s:f"v_add_u32 v{c.vA}, s20, v{c.vAb}")
    aoff=getattr(c,'aoff',lambda kk,i:kk*8192+i*1024)
    adv=getattr(c,'adv',lambda s:[])
    LAa=max(1,LA-1)
    def fillers(n,last,upd):
        f=[]; m=n+LA
        if last and m>=c.U*G: return f
        if m%G==0:
            f.append(('x',"s_barrier")); upd.clear()
        kk=(m%G)//NW; j=m%NW; cl,imm=c.wmap[j]
        if j<LAa:
            u=m//NW
            for i in range(NA):
                if i*LAa//NA==j:
                    if 'a' not in upd: upd.add('a'); f.append(('x',aupd(m//G)))
                    f.append(('r',('A',u,i),f"ds_read_b128 {vr(Ar(u,i))}, v{c.vA} offset:{aoff(kk,i)}"))
        if ('w',cl) not in upd: upd.add(('w',cl)); f.append(('x',f"v_add_u32 v{c.vW+cl}, s20, v{c.vWb+cl}"))
        f.append(('r',('W',m,0),f"ds_read_b64_tr_b16 {vr(Wr(m),2)}, v{c.vW+cl} offset:{imm+kk*4096}"))
        f.append(('r',('W',m,1),f"ds_read_b64_tr_b16 {vr(Wr(m)+2,2)}, v{c.vW+cl} offset:{imm+kk*4096+w2}"))
        if (m+1)%G==0:
            for t in [f"s_add_u32 s20, s20, {c.sadv(m//G) if hasattr(c,'sadv') else c.SLOT}",f"s_cmp_eq_u32 s20, {c.R*c.SLOT}","s_cselect_b32 s20, 0, s20"]+adv(m//G): f.append(('x',t))
        return f
    upd=set(); q0=[]
    for n in range(-LA,0):
        for f in fillers(n,False,upd):
            a(f[-1])
            if f[-1]=="s_barrier" and st is not None: stamp(a,st)
            if f[0]=='r': q0.append(f[1])
    upd0=set(upd)
    def body(last,loop):
        q=list(q0); upd=set(upd0)
        for n in range(c.U*G):
            u=n//NW; j=n%NW
            ms=[]
            for i in range(c.MI):
                acc=c.acc(i,j); x,y=(Ar(u,i),Wr(n)) if j in c.swap else (Wr(n),Ar(u,i))
                ms.append(([('W',n,1),('A',u,i)],f"{MF} {vr(acc)}, {vr(x)}, {vr(y)}, {vr(acc)}"))
            if c.hal and j in c.hal:
                acc,sw=c.hal[j]; x,y=(Ar(u,c.MI),Wr(n)) if sw else (Wr(n),Ar(u,c.MI))
                ms.append(([('W',n,1),('A',u,c.MI)],f"{MF} {vr(acc)}, {vr(x)}, {vr(y)}, {vr(acc)}"))
            fs=fillers(n,last,upd)
            if loop and n==c.U*G-1: fs+= [('x',"s_sub_u32 s24, s24, 1"),('x',"s_cmp_lg_u32 s24, 0")]
            for k,(nd,t) in enumerate(ms):
                pos=max([q.index(x) for x in nd if x in q],default=-1)
                if pos>=0:
                    a(f"s_waitcnt lgkmcnt({min(15,len(q)-1-pos)})"); q=q[pos+1:]
                a(t)
                lo=len(fs)*k//len(ms); hi=len(fs)*(k+1)//len(ms)
                for f in fs[lo:hi]:
                    a(f[-1])
                    if f[0]=='r': q.append(f[1])
    segs=segs or [(c.NS//c.U,"")]
    assert sum(x[0] for x in segs)==c.NS//c.U
    for k,(nb,pre) in enumerate(segs):
        a(pre)
        if k==len(segs)-1: nb-=1
        if nb==1: body(False,False)
        elif nb>1:
            a(f"s_mov_b32 s24, {nb}\n.p2align 3\nCL_{name}_{k}:"); body(False,True); a(f"s_cbranch_scc1 CL_{name}_{k}")
    body(True,False)
    if st is not None: stamp(a,st+1)

def zero(a,lo,n):
    for i in range(lo,lo+n): a(f"v_mov_b32 v{i}, 0")
C1=-2*0.7978845608028654*1.4426950408889634; C2=C1*0.044715
def gelu_consts(a): a(f"s_mov_b32 s40, {fl(C1)}\ns_mov_b32 s41, {fl(C1)}\ns_mov_b32 s42, {fl(C2)}\ns_mov_b32 s43, {fl(C2)}\nv_mov_b32 v14, s40\nv_mov_b32 v15, s40")
def gelu(a,prs,tmp):
    T=[tmp+2*i for i in range(len(prs))]
    for p,t in zip(prs,T): a(f"v_pk_mul_f32 {vr(t,2)}, {vr(p,2)}, {vr(p,2)}")
    for p,t in zip(prs,T): a(f"v_pk_fma_f32 {vr(t,2)}, {vr(t,2)}, s[42:43], v[14:15]")
    for p,t in zip(prs,T): a(f"v_pk_mul_f32 {vr(t,2)}, {vr(t,2)}, {vr(p,2)}")
    for p,t in zip(prs,T): a(f"v_exp_f32 v{t}, v{t}\nv_exp_f32 v{t+1}, v{t+1}")
    for p,t in zip(prs,T): a(f"v_pk_add_f32 {vr(t,2)}, {vr(t,2)}, 1.0 op_sel_hi:[1,0]")
    for p,t in zip(prs,T): a(f"v_rcp_f32 v{t}, v{t}\nv_rcp_f32 v{t+1}, v{t+1}")
    for p,t in zip(prs,T): a(f"v_pk_mul_f32 {vr(p,2)}, {vr(p,2)}, {vr(t,2)}")
def cvt(a,d,s,n):
    for i in range(n): a(f"v_cvt_pk_bf16_f32 v{d+i}, v{s+2*i}, v{s+2*i+1}")
def kd(name,vg):
    vg=(vg+7)//8*8
    return f""".p2align 6
.amdhsa_kernel {name}
  .amdhsa_next_free_vgpr {vg}
  .amdhsa_next_free_sgpr 102
  .amdhsa_accum_offset {vg}
  .amdhsa_group_segment_fixed_size 0
  .amdhsa_kernarg_size 88
  .amdhsa_user_sgpr_count 2
  .amdhsa_user_sgpr_kernarg_segment_ptr 1
  .amdhsa_system_sgpr_workgroup_id_x 1
.end_amdhsa_kernel
"""
```

```python
from core import *
def red16(a,rs):
    for sh in (8,4,2,1):
        for r in rs: a(f"v_add_f32_dpp v{r}, v{r}, v{r} row_ror:{sh} row_mask:0xf bank_mask:0xf")
def red64(a,rs,t):
    red16(a,rs)
    for sw in ('16','32'):
        for i,r in enumerate(rs): a(f"v_mov_b32 v{t+i}, v{r}")
        for i,r in enumerate(rs): a(f"v_permlane{sw}_swap_b32 v{r}, v{t+i}")
        for i,r in enumerate(rs): a(f"v_add_f32 v{r}, v{r}, v{t+i}")
def unpack(a,d,s,n):
    for i in range(n): a(f"v_and_b32 v{d+2*i+1}, 0xffff0000, v{s+i}\nv_lshlrev_b32 v{d+2*i}, 16, v{s+i}")
def k0():
    a=A(); n="k0_kernel"
    header(a,n,[(8,0),(12,48)],None)
    srd(a,8,4*MB); srd(a,12,1024*7168)
    a("s_lshl_b32 s20, s2, 3\ns_lshl_b32 s19, s16, 1\ns_add_u32 s20, s20, s19\ns_lshl_b32 s21, s20, 11\nv_lshlrev_b32 v2, 4, v0")
    a("s_and_b32 s22, s2, 15\ns_lshr_b32 s23, s2, 4\ns_lshl_b32 s24, s22, 6\ns_lshl_b32 s19, s16, 4\ns_add_u32 s24, s24, s19\ns_mul_i32 s24, s24, 7168\ns_lshl_b32 s19, s23, 9\ns_add_u32 s24, s24, s19")
    a("v_lshrrev_b32 v3, 5, v0\nv_mul_u32_u24 v3, 7168, v3\nv_and_b32 v4, 31, v0\nv_lshl_add_u32 v3, v4, 4, v3")
    a("s_waitcnt lgkmcnt(0)")
    for i in range(4): a(f"buffer_load_dwordx4 {vr(16+4*i)}, v2, s[8:11], s21 offen offset:{i*1024}")
    a("s_cmp_ge_u32 s2, 224\ns_cselect_b32 s14, 0, s14")
    for i in range(8): a(f"buffer_load_dwordx4 {vr(64+4*i)}, v3, s[12:15], s24 offen\ns_add_u32 s24, s24, 14336")
    a("s_waitcnt vmcnt(8)"); stamp(a,1)
    unpack(a,32,16,16)
    for r in range(2):
        b=32+16*r; a(f"v_pk_add_f32 {vr(6+2*r,2)}, {vr(b,2)}, {vr(b+2,2)}")
    for i in range(2,8):
        for r in range(2): a(f"v_pk_add_f32 {vr(6+2*r,2)}, {vr(6+2*r,2)}, {vr(32+16*r+2*i,2)}")
    a("v_add_f32 v6, v6, v7\nv_add_f32 v8, v8, v9"); red64(a,[6,8],10)
    a(f"v_mul_f32 v6, {fl(-1/1024)}, v6\nv_mul_f32 v8, {fl(-1/1024)}, v8")
    for i in range(8):
        for r in range(2): a(f"v_pk_add_f32 {vr(32+16*r+2*i,2)}, {vr(32+16*r+2*i,2)}, {vr(6+2*r,2)} op_sel_hi:[1,0]")
    for r in range(2): a(f"v_pk_mul_f32 {vr(6+2*r,2)}, {vr(32+16*r,2)}, {vr(32+16*r,2)}")
    for i in range(1,8):
        for r in range(2): a(f"v_pk_fma_f32 {vr(6+2*r,2)}, {vr(32+16*r+2*i,2)}, {vr(32+16*r+2*i,2)}, {vr(6+2*r,2)}")
    a("v_add_f32 v6, v6, v7\nv_add_f32 v8, v8, v9"); red64(a,[6,8],10)
    a(f"s_mov_b32 s25, {fl(1e-5)}")
    for r in (6,8): a(f"v_mul_f32 v{r+1}, {fl(1/1024)}, v{r}\nv_add_f32 v{r}, s25, v{r+1}\nv_rsq_f32 v{r}, v{r}")
    for r in (6,8): a(f"v_mul_f32 v{r+1}, v{r+1}, v{r}\nv_fma_f32 v{r+1}, v{r+1}, v{r}, s25\nv_rsq_f32 v{r+1}, v{r+1}")
    for i in range(8):
        for r in range(2): a(f"v_pk_mul_f32 {vr(32+16*r+2*i,2)}, {vr(32+16*r+2*i,2)}, {vr(6+2*r,2)} op_sel_hi:[1,0]")
    cvt(a,16,32,16)
    a("s_mul_i32 s19, s16, 4128\nv_add_u32 v4, s19, v2")
    for i in range(4): a(f"ds_write_b128 v4, {vr(16+4*i)} offset:{(i>>1)*2064+(i&1)*1024}")
    a("s_waitcnt vmcnt(0)")
    a(f"v_mov_b32 v10, v7\nv_mov_b32 v11, v9\ns_lshl_b32 s19, s20, 2\ns_add_u32 s19, s19, {CS}\ns_mov_b64 exec, 1\nbuffer_store_dwordx2 v[10:11], v2, s[4:7], s19 offen\ns_mov_b64 exec, -1")
    unpack(a,32,64,4)
    for i in range(1,8):
        unpack(a,40,64+4*i,4)
        for e in range(4): a(f"v_pk_add_f32 {vr(32+2*e,2)}, {vr(32+2*e,2)}, {vr(40+2*e,2)}")
    a("s_lshl_b32 s19, s16, 11\nv_lshl_add_u32 v4, v0, 5, s19\nds_write_b128 v4, v[32:35] offset:16896\nds_write_b128 v4, v[36:39] offset:16912")
    a("v_and_b32 v5, 7, v0\nv_mul_u32_u24 v4, 2064, v5\nv_bfe_u32 v6, v0, 3, 1\nv_lshl_add_u32 v4, v6, 7, v4\nv_lshrrev_b32 v7, 4, v0\nv_lshl_add_u32 v4, v7, 3, v4\ns_lshl_b32 s19, s16, 9\nv_add_u32 v4, s19, v4")
    a("v_lshlrev_b32 v5, 4, v5\nv_lshl_add_u32 v5, v7, 8, v5\nv_lshl_add_u32 v5, v6, 18, v5")
    a(f"s_lshl_b32 s21, s16, 20\ns_lshr_b32 s19, s2, 1\ns_lshl_b32 s19, s19, 10\ns_add_u32 s21, s21, s19\ns_and_b32 s19, s2, 1\ns_lshl_b32 s19, s19, 7\ns_add_u32 s21, s21, s19")
    a("s_lshl_b32 s19, s16, 8\nv_lshl_add_u32 v8, v0, 2, s19")
    a("s_waitcnt lgkmcnt(0)\ns_barrier"); stamp(a,2)
    for i in range(4):
        o=((i&1)+4*(i>>1))*64
        a(f"ds_read_b64 {vr(16+4*i,2)}, v4 offset:{o}\nds_read_b64 {vr(18+4*i,2)}, v4 offset:{o+32}")
    for i in range(8): a(f"ds_read_b32 v{32+i}, v8 offset:{16896+1024*i}")
    for i in range(4):
        a(f"s_add_u32 s19, s21, {XN+((i&1)+4*(i>>1))*KB}\ns_waitcnt lgkmcnt({14-2*i})\nbuffer_store_dwordx4 {vr(16+4*i)}, v5, s[4:7], s19 offen")
    a(f"s_cmp_ge_u32 s2, 224\ns_cbranch_scc1 FIN_{n}\ns_waitcnt lgkmcnt(0)")
    for i in range(1,8): a(f"v_add_f32 v32, v32, v{32+i}")
    a(f"s_mul_i32 s19, s22, 14336\ns_lshl_b32 s23, s23, 10\ns_add_u32 s19, s19, s23\ns_add_u32 s19, s19, {CSUM}\nbuffer_store_dword v32, v8, s[4:7], s19 offen")
    a(f"FIN_{n}:"); stamp_end(a,0)
    a(f"END_{n}:\ns_endpgm")
    return n,a.text(),96,256,25600

def k1():
    a=A(); n="k1_kernel"; c=Cfg()
    c.KS=32;c.R=6;c.NS=32;c.WB=16384;c.SLOT=25600;c.halo=True
    c.rowb=[6144,2048]; c.panels=[(8,0,0),(8,0,2048),(8,0,4096),(12,1,0)]
    EX=c.R*c.SLOT
    header(a,n,[(8,8),(12,32)],'8x4')
    srd(a,8,1024*6144); srd(a,12,2*MB)
    a(f"s_cmp_lt_u32 s16, 4\ns_cbranch_scc1 CONS_{n}")
    a(f"s_lshl_b32 s21, s18, 7\ns_mov_b32 s22, s21\ns_lshl_b32 s23, s17, 13\ns_sub_u32 s30, s23, 1024\ns_max_i32 s30, s30, 0\ns_waitcnt lgkmcnt(0)")
    producer(a,c,n)
    a(f"CONS_{n}:")
    a("s_lshr_b32 s32, s16, 1\ns_and_b32 s33, s16, 1\ns_lshl_b32 s34, s33, 1\ns_add_u32 s35, s34, 1\ns_lshl_b32 s36, s32, 2")
    c.vWb=16;c.vW=18;c.vAb=20;c.vA=21;c.vWr=24;c.vAr=40
    ACC=80; HAL=208; CC=216; MK=224
    consumer_addr(a,c,['s34','s35'],'s36')
    c.wmap=[(j&1,(j>>1)*4096) for j in range(8)]; c.MI=4;c.LA=3;c.U=2;c.swap={4,5}
    c.acc=lambda i,j:ACC+32*i+4*j
    a(f"s_lshl_b32 s37, s17, 7\ns_lshl_b32 s19, s32, 6\ns_add_u32 s37, s37, s19\nv_and_b32 v2, 15, v0\nv_lshlrev_b32 v3, 2, v2\ns_lshl_b32 s19, s37, 2\ns_add_u32 s19, s19, {CS}\ns_waitcnt lgkmcnt(0)")
    for i in range(4): a(f"buffer_load_dword v{CC+2*i}, v3, s[4:7], s19 offen offset:{64*i}")
    a(f"v_lshrrev_b32 v3, 4, v0\nv_lshlrev_b32 v3, 2, v3\nv_sub_u32 v3, v2, v3\nv_mov_b32 v5, {fl(-1e30)}")
    for e in range(4):
        for h in range(2):
            a(f"v_add_u32 v4, {16-16*h-e}, v3\nv_and_b32 v4, 0xfffffff1, v4\nv_cmp_eq_u32 vcc, 0, v4\nv_cndmask_b32 v{MK+4*h+e}, v5, 0, vcc")
    a("s_cmp_eq_u32 s37, 0\ns_cselect_b64 vcc, -1, 0")
    for e in range(4): a(f"v_cndmask_b32 v{MK+8+e}, v{MK+e}, v5, vcc")
    zero(a,ACC,136); gelu_consts(a)
    a(f"s_cmp_eq_u32 s32, 1\ns_cbranch_scc1 C1_{n}")
    for wm in range(2):
        if wm: a(f"C1_{n}:")
        c.hal={2:(HAL,False),3:(HAL+4,False)} if wm==0 else {4:(HAL,True),5:(HAL+4,True)}
        c.haloff=8192-4096*wm
        mainloop(a,c,n+str(wm))
        Q=lambda i:24+4*i; K=lambda i:44+4*i; V=lambda d,i:62+10*d+2*i
        a(f"s_mul_i32 s19, s33, 3072\ns_add_u32 s19, s19, {EX}\nv_lshl_add_u32 v2, v0, 4, s19")
        if wm==0:
            cvt(a,K(3),c.acc(3,2),4); cvt(a,4,c.acc(3,4),4)
            a(f"ds_write_b128 v2, {vr(K(3))}\nds_write_b128 v2, v[4:7] offset:1024")
            cvt(a,K(-1),HAL,4)
        else:
            cvt(a,4,HAL,4); a("ds_write_b128 v2, v[4:7] offset:2048"); cvt(a,K(3),c.acc(3,2),4)
        for i in range(4):
            cvt(a,Q(i),c.acc(i,0),4)
            if i<3: cvt(a,K(i),c.acc(i,2),4)
            for d in range(2): cvt(a,V(d,i),c.acc(i,4+d),2)
        a("s_waitcnt lgkmcnt(0)\ns_barrier")
        if wm==0: a(f"ds_read_b64 {vr(V(0,-1),2)}, v2 offset:2048\nds_read_b64 {vr(V(1,-1),2)}, v2 offset:2056")
        else: a(f"ds_read_b128 {vr(K(-1))}, v2\nds_read_b64 {vr(V(0,-1),2)}, v2 offset:1024\nds_read_b64 {vr(V(1,-1),2)}, v2 offset:1032")
        S=lambda i:c.acc(i,0)
        T=lambda i:c.acc(i,2)
        for i in (3,2,1,0):
            a(f"{MF} {vr(S(i)+4)}, {vr(K(i))}, {vr(Q(i))}, {vr(MK+4)}")
            if i==0: a("s_waitcnt lgkmcnt(0)")
            a(f"{MF} {vr(S(i))}, {vr(K(i-1))}, {vr(Q(i))}, {vr(MK+8 if i==0 else MK)}")
        a("s_waitcnt vmcnt(0)")
        for i in range(4):
            for e in range(4): a(f"v_pk_mul_f32 {vr(c.acc(i,6)+2*e,2)}, {vr(c.acc(i,6)+2*e,2)}, {vr(CC+2*i,2)} op_sel_hi:[1,0]")
        I=(3,2,1,0)
        for i in I: a(f"v_max3_f32 v{T(i)}, v{S(i)}, v{S(i)+1}, v{S(i)+2}\nv_max3_f32 v{T(i)+1}, v{S(i)+3}, v{S(i)+4}, v{S(i)+5}")
        for i in I: a(f"v_max3_f32 v{T(i)}, v{T(i)}, v{S(i)+6}, v{S(i)+7}")
        for i in I: a(f"v_max_f32 v{T(i)}, v{T(i)}, v{T(i)+1}")
        def xred(op):
            for sw in ('16','32'):
                for i in I: a(f"v_mov_b32 v{T(i)+1}, v{T(i)}")
                for i in I: a(f"v_permlane{sw}_swap_b32 v{T(i)}, v{T(i)+1}")
                for i in I: a(f"{op} v{T(i)}, v{T(i)}, v{T(i)+1}")
        xred("v_max_f32")
        sc=32**-0.5*1.4426950408889634
        a(f"s_mov_b32 s44, {fl(sc)}\ns_mov_b32 s45, {fl(sc)}")
        for i in I: a(f"v_mul_f32 v{T(i)}, {fl(-sc)}, v{T(i)}")
        for i in I:
            for e in range(4): a(f"v_pk_fma_f32 {vr(S(i)+2*e,2)}, {vr(S(i)+2*e,2)}, s[44:45], {vr(T(i),2)} op_sel_hi:[1,1,0]")
        for i in I:
            for e in range(8): a(f"v_exp_f32 v{S(i)+e}, v{S(i)+e}")
        for i in I: a(f"v_pk_add_f32 {vr(T(i),2)}, {vr(S(i),2)}, {vr(S(i)+2,2)}\nv_pk_add_f32 {vr(T(i)+2,2)}, {vr(S(i)+4,2)}, {vr(S(i)+6,2)}")
        for i in I: a(f"v_pk_add_f32 {vr(T(i),2)}, {vr(T(i),2)}, {vr(T(i)+2,2)}")
        for i in I: a(f"v_add_f32 v{T(i)}, v{T(i)}, v{T(i)+1}")
        xred("v_add_f32")
        for i in I: a(f"v_rcp_f32 v{T(i)}, v{T(i)}")
        for i in I:
            for e in range(4): a(f"v_pk_mul_f32 {vr(S(i)+2*e,2)}, {vr(S(i)+2*e,2)}, {vr(T(i),2)} op_sel_hi:[1,0]")
        for i in I: cvt(a,Q(i),S(i),4)
        for i in I:
            for d in range(2): a(f"{MF} {vr(S(i)+4*d)}, {vr(V(d,i-1))}, {vr(Q(i))}, 0")
        a(f"s_lshl_b32 s38, s18, 1\ns_add_u32 s38, s38, s33\ns_lshl_b32 s39, s38, 17\ns_lshl_b32 s19, s37, 6\ns_add_u32 s46, s39, s19\ns_add_u32 s46, s46, {OO}\ns_add_u32 s39, s39, {HS}\nv_lshlrev_b32 v2, 4, v0")
        a("s_lshr_b32 s19, s38, 4\ns_add_u32 s19, s19, 1\ns_sub_u32 s47, 0, s19\ns_bitcmp1_b32 s38, 3\ns_cselect_b32 s19, s47, s19\ns_add_u32 s19, s19, s37")
        a("v_and_b32 v3, 15, v0\nv_add_u32 v3, s19, v3\nv_and_b32 v4, 48, v0\nv_lshlrev_b32 v4, 4, v4")
        gelu(a,[c.acc(3,6)+2*e for e in range(4)]+[c.acc(2,6)+2*e for e in range(4)],40)
        for i in I:
            cvt(a,Q(i),S(i),4); a(f"buffer_store_dwordx4 {vr(Q(i))}, v2, s[4:7], s46 offen offset:{1024*i}")
        def hstore(i):
            cvt(a,T(i),c.acc(i,6),4)
            a(f"v_add_u32 v5, {16*i}, v3\nv_and_b32 v6, 0x7ff, v5\nv_cmp_eq_u32 vcc, v5, v6\nv_lshrrev_b32 v7, 4, v6\nv_and_b32 v6, 15, v6\nv_lshl_add_u32 v6, v6, 4, v4\nv_lshl_add_u32 v{8+i}, v7, 10, v6")
            if (wm==0 and i==0) or (wm==1 and i==3):
                for e in range(4): a(f"v_cndmask_b32 v{T(i)+e}, 0, v{T(i)+e}, vcc")
            a(f"buffer_store_dwordx4 {vr(T(i))}, v{8+i}, s[4:7], s39 offen")
        hstore(3); hstore(2)
        gelu(a,[c.acc(1,6)+2*e for e in range(4)]+[c.acc(0,6)+2*e for e in range(4)],40)
        hstore(1); hstore(0); stamp_end(a,1)
        a("s_endpgm")
    a(f"END_{n}:\ns_endpgm")
    return n,a.text(),240,512,EX+6144
```

```python
from core import *
from k01 import unpack
def addres(a,acc,res,t):
    unpack(a,t,res,4)
    for e in range(4): a(f"v_pk_add_f32 {vr(acc+2*e,2)}, {vr(acc+2*e,2)}, {vr(t+2*e,2)}")
def rowmaj_off(a,d):
    a(f"v_and_b32 v{d}, 15, v0\nv_lshlrev_b32 v{d}, 11, v{d}\nv_bfe_u32 v1, v0, 4, 1\nv_lshl_add_u32 v{d}, v1, 5, v{d}\nv_lshrrev_b32 v1, 5, v0\nv_lshl_add_u32 v{d}, v1, 4, v{d}")
def k2():
    a=A(); n="k2_kernel"; c=Cfg()
    c.KS=32;c.R=9;c.NS=32;c.WB=8192;c.SLOT=16384;c.halo=False
    c.rowb=[2048]; c.panels=[(8,0,0),(8,0,128)]
    header(a,n,[(8,40),(48,16),(12,0)],'8x4')
    srd(a,8,2*MB); srd(a,12,4*MB)
    a("s_lshr_b32 s50, s18, 3\ns_and_b32 s18, s18, 7")
    a(f"s_cmp_lt_u32 s16, 4\ns_cbranch_scc1 CONS_{n}")
    a(f"s_lshl_b32 s21, s18, 8\ns_lshl_b32 s23, s17, 13\ns_lshl_b32 s19, s50, 22\ns_add_u32 s23, s23, s19\ns_add_u32 s23, s23, {HS}\ns_waitcnt lgkmcnt(0)")
    a("s_cmp_eq_u32 s50, 1\ns_cselect_b32 s8, s48, s8\ns_cselect_b32 s9, s49, s9")
    producer(a,c,n)
    a(f"CONS_{n}:")
    a("s_lshr_b32 s32, s16, 1\ns_and_b32 s33, s16, 1\ns_lshl_b32 s34, s33, 2\ns_add_u32 s35, s34, 1\ns_add_u32 s36, s34, 2\ns_add_u32 s37, s34, 3\ns_lshl_b32 s38, s32, 2")
    c.vWb=16;c.vW=20;c.vAb=24;c.vA=25;c.vWr=28;c.vAr=44
    ACC=76; RES=140
    consumer_addr(a,c,['s34','s35','s36','s37'],'s38')
    c.wmap=[(j,0) for j in range(4)]; c.MI=4;c.LA=3;c.U=2;c.swap=set();c.hal=None
    c.acc=lambda i,j:ACC+16*i+4*j
    a("s_lshl_b32 s37, s17, 7\ns_lshl_b32 s19, s32, 6\ns_add_u32 s37, s37, s19\ns_lshl_b32 s36, s18, 1\ns_add_u32 s36, s36, s33\ns_lshl_b32 s39, s36, 18\ns_lshl_b32 s19, s37, 6\ns_add_u32 s39, s39, s19\nv_lshlrev_b32 v2, 4, v0")
    rowmaj_off(a,3)
    a(f"s_waitcnt lgkmcnt(0)\ns_cmp_eq_u32 s50, 1\ns_cbranch_scc1 RL_{n}")
    a(f"s_add_u32 s19, s39, {KB}")
    for i in range(4):
        for p in range(2): a(f"buffer_load_dwordx4 {vr(RES+8*i+4*p)}, v2, s[4:7], {'s19' if p else 's39'} offen offset:{1024*i}")
    a(f"s_branch RD_{n}\nRL_{n}:\ns_lshl_b32 s19, s37, 11\ns_lshl_b32 s35, s36, 7\ns_add_u32 s19, s19, s35")
    for i in range(4):
        for p in range(2): a(f"buffer_load_dwordx4 {vr(RES+8*i+4*p)}, v3, s[12:15], s19 offen offset:{64*p}")
        a("s_add_u32 s19, s19, 32768")
    a(f"RD_{n}:")
    zero(a,ACC,64)
    mainloop(a,c,n)
    a(f"s_waitcnt vmcnt(0)\ns_lshl_b32 s19, s50, 22\ns_add_u32 s39, s39, s19\ns_add_u32 s39, s39, {X1}\ns_add_u32 s38, s39, {KB}\ns_cmp_eq_u32 s50, 0\ns_cbranch_scc1 NS_{n}")
    for q in range(8): a(f"v_permlane16_swap_b32 v{RES+4*q}, v{RES+4*q+2}\nv_permlane16_swap_b32 v{RES+4*q+1}, v{RES+4*q+3}")
    a(f"NS_{n}:")
    for i in range(4):
        for p in range(2):
            addres(a,c.acc(i,2*p),RES+8*i+4*p,28+8*p)
            cvt(a,RES+8*i+4*p,c.acc(i,2*p),4)
            a(f"buffer_store_dwordx4 {vr(RES+8*i+4*p)}, v2, s[4:7], {'s38' if p else 's39'} offen offset:{1024*i}")
    a(f"s_cbranch_scc0 FIN_{n}")
    SU=lambda i:44+4*i; SQ=lambda i:46+4*i
    for i in range(4): a(f"v_pk_add_f32 {vr(SU(i),2)}, {vr(c.acc(i,0),2)}, {vr(c.acc(i,0)+2,2)}\nv_pk_mul_f32 {vr(SQ(i),2)}, {vr(c.acc(i,0),2)}, {vr(c.acc(i,0),2)}")
    for e in range(1,8):
        for i in range(4):
            x=vr(c.acc(i,0)+2*e,2)
            if e>1: a(f"v_pk_add_f32 {vr(SU(i),2)}, {vr(SU(i),2)}, {x}")
            a(f"v_pk_fma_f32 {vr(SQ(i),2)}, {x}, {x}, {vr(SQ(i),2)}")
    for i in range(4): a(f"v_add_f32 v{SU(i)}, v{SU(i)}, v{SU(i)+1}\nv_add_f32 v{SQ(i)}, v{SQ(i)}, v{SQ(i)+1}")
    for F in (SU,SQ): a(f"v_permlane16_swap_b32 v{F(0)}, v{F(1)}\nv_permlane16_swap_b32 v{F(2)}, v{F(3)}")
    for F in (SU,SQ): a(f"v_add_f32 v{F(0)}, v{F(0)}, v{F(1)}\nv_add_f32 v{F(2)}, v{F(2)}, v{F(3)}")
    for F in (SU,SQ): a(f"v_permlane32_swap_b32 v{F(0)}, v{F(2)}")
    a(f"v_add_f32 v4, v{SU(0)}, v{SU(2)}\nv_add_f32 v5, v{SQ(0)}, v{SQ(2)}\nv_lshlrev_b32 v2, 3, v0\ns_lshl_b32 s19, s36, 14\ns_lshl_b32 s37, s37, 3\ns_add_u32 s19, s19, s37\ns_add_u32 s19, s19, {ST}\nbuffer_store_dwordx2 v[4:5], v2, s[4:7], s19 offen")
    a(f"FIN_{n}:"); stamp_end(a,int(n[1]))
    a(f"END_{n}:\ns_endpgm")
    return n,a.text(),176,512,c.R*c.SLOT

def k3():
    a=A(); n="k3_kernel"; c=Cfg()
    c.KS=32;c.R=6;c.NS=32;c.WB=16384;c.SLOT=24576;c.halo=False
    c.rowb=[7168]; c.panels=[(8,0,128*p) for p in range(4)]
    EX=c.R*c.SLOT
    header(a,n,[(8,48)],'8x4')
    srd(a,8,1024*7168)
    a(f"s_cmp_lt_u32 s16, 4\ns_cbranch_scc1 CONS_{n}")
    a(f"s_mul_i32 s21, s18, 448\ns_and_b32 s21, s21, 0xffffff80\ns_lshl_b32 s23, s17, 13\ns_add_u32 s23, s23, {X1}\ns_waitcnt lgkmcnt(0)")
    def pti(a):
        a(f"v_lshl_add_u32 v10, v0, 2, s31\ns_mul_i32 s19, s18, 896\ns_add_u32 s19, s19, {CSUM}")
        for i in range(16): a(f"buffer_load_dword v{16+i}, v10, s[4:7], s19 offen\ns_add_u32 s19, s19, 14336")
        a(f"v_and_b32 v11, 31, v0\nv_lshlrev_b32 v11, 3, v11\nv_add_u32 v12, s31, v11\nv_lshrrev_b32 v11, 5, v0\nv_lshl_add_u32 v11, v11, 17, v12\ns_lshl_b32 s19, s17, 10\ns_add_u32 s19, s19, {ST}")
        for i in range(8): a(f"buffer_load_dwordx2 {vr(32+2*i,2)}, v11, s[4:7], s19 offen\ns_add_u32 s19, s19, 16384")
        return 24
    def pt(a):
        a("s_waitcnt vmcnt(0)")
        for i in range(1,8): a(f"v_pk_add_f32 v[16:17], v[16:17], {vr(16+2*i,2)}\nv_pk_add_f32 v[32:33], v[32:33], {vr(32+2*i,2)}")
        a(f"v_add_f32 v16, v16, v17\nv_mov_b32 v34, v32\nv_mov_b32 v35, v33\nv_add_u32 v10, {EX}, v10\nds_write_b32 v10, v16")
        a("v_permlane32_swap_b32 v32, v34\nv_permlane32_swap_b32 v33, v35\nv_add_f32 v32, v32, v34\nv_add_f32 v33, v33, v35")
        a(f"v_mul_f32 v32, {fl(-1/1024)}, v32\nv_mul_f32 v33, {fl(1/1024)}, v33\nv_fma_f32 v33, -v32, v32, v33\nv_max_f32 v33, 0, v33\nv_add_f32 v33, {fl(1e-5)}, v33\nv_rsq_f32 v33, v33\nv_add_u32 v12, {EX+1024}, v12\nds_write_b64 v12, v[32:33]\ns_waitcnt lgkmcnt(0)\ns_barrier")
    c.ptail_issue=pti; c.ptail=pt
    producer(a,c,n)
    a(f"CONS_{n}:")
    a("s_lshr_b32 s32, s16, 1\ns_and_b32 s33, s16, 1\ns_and_b32 s19, s18, 1\ns_lshl_b32 s19, s19, 1\ns_lshl_b32 s34, s33, 3\ns_add_u32 s34, s34, s19\ns_add_u32 s35, s34, 1\ns_add_u32 s36, s34, 2\ns_add_u32 s37, s34, 3\ns_add_u32 s38, s19, s33\ns_add_u32 s38, s38, 6\ns_lshl_b32 s39, s32, 2")
    c.vWb=16;c.vW=21;c.vAb=26;c.vA=27;c.vWr=28;c.vAr=44
    ACC=76
    consumer_addr(a,c,['s34','s35','s36','s37','s38'],'s39')
    c.wmap=[(0,0),(1,0),(2,0),(3,0),(0,4096),(1,4096),(4,0)]; c.MI=4;c.LA=3;c.U=4;c.swap=set();c.hal=None
    c.acc=lambda i,j:ACC+28*i+4*j
    zero(a,ACC,112); gelu_consts(a)
    a("s_waitcnt lgkmcnt(0)")
    mainloop(a,c,n)
    CSR=188; STR=216; PK=224
    a(f"v_and_b32 v2, 48, v0\ns_lshl_b32 s19, s33, 9\ns_add_u32 s19, s19, {EX}\nv_add_u32 v3, s19, v2\ns_lshl_b32 s19, s33, 6\ns_add_u32 s19, s19, {EX+384}\nv_add_u32 v4, s19, v2")
    a(f"v_and_b32 v5, 15, v0\ns_lshl_b32 s19, s32, 9\ns_add_u32 s19, s19, {EX+1024}\nv_lshl_add_u32 v5, v5, 3, s19\ns_barrier")
    for i in range(4): a(f"ds_read_b64 {vr(STR+2*i,2)}, v5 offset:{128*i}")
    for j in range(6): a(f"ds_read_b128 {vr(CSR+4*j)}, v3 offset:{64*j}")
    a(f"ds_read_b128 {vr(CSR+24)}, v4")
    a(f"s_mul_i32 s34, s18, {7*KB}\ns_lshl_b32 s19, s17, 13\ns_add_u32 s34, s34, s19\ns_lshl_b32 s19, s32, 12\ns_add_u32 s34, s34, s19\ns_add_u32 s34, s34, {GG}")
    a(f"s_lshl_b32 s19, s33, 3\ns_add_u32 s38, s34, s19\ns_add_u32 s38, s38, {3*KB}\ns_lshl_b32 s19, s33, 19\ns_add_u32 s34, s34, s19\ns_add_u32 s35, s34, {KB}\ns_add_u32 s36, s34, {2*KB}\nv_lshlrev_b32 v2, 4, v0\ns_waitcnt lgkmcnt(0)")
    for i in range(4):
        prs=[c.acc(i,0)+2*e for e in range(14)]
        for e,p in enumerate(prs): a(f"v_pk_fma_f32 {vr(p,2)}, {vr(CSR+2*e,2)}, {vr(STR+2*i,2)}, {vr(p,2)} op_sel_hi:[1,0,1]")
        for e,p in enumerate(prs): a(f"v_pk_mul_f32 {vr(p,2)}, {vr(p,2)}, {vr(STR+2*i,2)} op_sel:[0,1] op_sel_hi:[1,1]")
        gelu(a,prs,28)
        pk=PK+16*(i&1)
        cvt(a,pk,c.acc(i,0),14)
        for p in range(3): a(f"buffer_store_dwordx4 {vr(pk+4*p)}, v2, s[4:7], s{34+p} offen offset:{1024*i}")
        a(f"buffer_store_dwordx2 {vr(pk+12,2)}, v2, s[4:7], s38 offen offset:{1024*i}")
    a(f"FIN_{n}:"); stamp_end(a,int(n[1]))
    a(f"END_{n}:\ns_endpgm")
    return n,a.text(),256,512,EX+2048

def k4():
    a=A(); n="k4_kernel"; c=Cfg()
    c.KS=64;c.R=6;c.NS=56;c.WB=8192;c.SLOT=24576;c.halo=False
    c.rowb=[2048]; c.panels=[(8,0,0)]
    header(a,n,[(8,56),(12,64)],'4x8')
    srd(a,8,3584*2048); srd(a,12,4*MB)
    a(f"s_cmp_lt_u32 s16, 4\ns_cbranch_scc1 CONS_{n}")
    a(f"s_lshl_b32 s21, s18, 7\ns_lshl_b32 s23, s17, 13\ns_add_u32 s23, s23, {GG}\ns_waitcnt lgkmcnt(0)")
    producer(a,c,n)
    a(f"CONS_{n}:")
    a("s_lshl_b32 s38, s16, 1")
    c.vWb=16;c.vW=20;c.vAb=24;c.vA=25;c.vWr=28;c.vAr=44
    ACC=60; RES=92
    consumer_addr(a,c,[0,1,2,3],'s38')
    c.wmap=[(j,0) for j in range(4)]; c.MI=2;c.LA=3;c.U=1;c.swap=set();c.hal=None
    c.acc=lambda i,j:ACC+16*i+4*j
    a(f"s_lshl_b32 s37, s17, 7\ns_lshl_b32 s19, s16, 5\ns_add_u32 s37, s37, s19\ns_lshl_b32 s39, s18, 18\ns_lshl_b32 s19, s37, 6\ns_add_u32 s39, s39, s19\nv_lshlrev_b32 v2, 4, v0\ns_waitcnt lgkmcnt(0)")
    for r,base in enumerate((X1,RR)):
        for p in range(2):
            a(f"s_add_u32 s19, s39, {base+p*KB}")
            for i in range(2): a(f"buffer_load_dwordx4 {vr(RES+16*r+8*i+4*p)}, v2, s[4:7], s19 offen offset:{1024*i}")
    rowmaj_off(a,3)
    zero(a,ACC,32)
    mainloop(a,c,n)
    a("s_waitcnt vmcnt(0)\ns_lshl_b32 s19, s37, 11\ns_lshl_b32 s35, s18, 7\ns_add_u32 s19, s19, s35")
    for i in range(2):
        for p in range(2):
            q=RES+8*i+4*p
            addres(a,c.acc(i,2*p),q,28); addres(a,c.acc(i,2*p),q+16,36)
            cvt(a,q,c.acc(i,2*p),4)
            a(f"v_permlane16_swap_b32 v{q}, v{q+2}\nv_permlane16_swap_b32 v{q+1}, v{q+3}")
            a(f"buffer_store_dwordx4 {vr(q)}, v3, s[12:15], s19 offen offset:{64*p}")
        a("s_add_u32 s19, s19, 32768")
    a(f"FIN_{n}:"); stamp_end(a,int(n[1]))
    a(f"END_{n}:\ns_endpgm")
    return n,a.text(),128,512,c.R*c.SLOT
```

```python
import sys
from core import *
from k01 import red16,red64,unpack
from k234 import addres,rowmaj_off
NAME="parallel_sum__sliding_local_dilated__mixer_s_mlp__prompt"
R=6; SLOT=25600; EX=R*SLOT; EX2=EX+6144; LDS=EX2+4096; CS1=CSUM+262144
FL=36*MB+32768; CS3=CSUM
PX,PQKV,PWO,PW1,PW2,PW3,PW4=64,66,68,72,74,76,78
def setsrd(r,p,size): return f"s_mov_b32 s{r}, s{p}\ns_mov_b32 s{r+1}, s{p+1}\ns_mov_b32 s{r+2}, {size}\ns_mov_b32 s{r+3}, 0x20000"
PH=[('p1',0,32,1),('p2a',32,16,2),('p2b',48,8,2),('p3',56,32,3),('p2c',88,8,2),('p4',96,56,2)]
NST=152
def ph(s): return [p for p in PH if p[1]<=s<p[1]+p[2]][0]
class Prod:
    def __init__(s): s.q=[]; s.steps=[]; s.cur=[]; s.np=0
    def __call__(s,t): s.cur.append(t)
    def op(s,tag,t): s.q.append(tag); s(t); assert len(s.q)<=63,len(s.q)
    def wait(s,*tags):
        pos=max([i for i,x in enumerate(s.q) if x in tags],default=-1)
        if pos>=0: s(f"s_waitcnt vmcnt({len(s.q)-1-pos})"); s.q=s.q[pos+1:]
    def step(s): s.steps.append("\n".join(s.cur)); s.cur=[]
    def W(s,S):
        n,f,_,ty=ph(S)
        if S==f:
            if n=='p1': s("s_lshl_b32 s21, s18, 7\ns_mov_b32 s22, s21\n"+setsrd(8,PQKV,6*MB)+"\n"+setsrd(12,PW1,2*MB))
            elif n=='p3': s("s_mul_i32 s21, s18, 448\ns_and_b32 s21, s21, 0xffffff80\n"+setsrd(8,PW3,7*MB))
            else:
                s("s_lshl_b32 s21, s18, 7\n"+setsrd(8,{'p2a':PW2,'p4':PW4}.get(n,PWO),7*MB if n=='p4' else 2*MB))
                if n=='p2c': s(f"s_add_u32 s21, s21, {MB}")
        L={1:[(2,8,21,0),(2,8,21,2048),(2,8,21,4096),(24,12,22,0)],3:[(9,8,21,128*p) for p in range(4)],2:[(3,8,21,0),(3,8,21,65536)]}[ty]
        for p,(v,sr,so,o) in enumerate(L):
            s(f"s_add_u32 m0, s20, {p*4096}"); x=f"s{so}"
            if o: s(f"s_add_u32 s25, s{so}, {o}"); x="s25"
            s.op(S,f"buffer_load_dwordx4 v{v}, s[{sr}:{sr+3}], {x} offen lds")
        s(f"s_add_u32 s21, s21, {[0,32*6144,64*2048,32*7168][ty]}")
        if ty==1: s("s_add_u32 s22, s22, 65536")
        s(f"s_add_u32 s20, s20, {SLOT if ty!=1 else 16384 if S&1 else 34816}\ns_cmp_ge_u32 s20, {EX}\ns_cselect_b32 s20, s26, s20")
    def A(s,S):
        n,f,_,ty=ph(S)
        if S==f:
            if n=='p1': s("s_lshl_b32 s23, s17, 18\ns_sub_u32 s30, s23, 32768\ns_max_i32 s30, s30, 0")
            else: s(f"s_lshl_b32 s23, s17, 13\ns_add_u32 s23, s23, {dict(p2a=HS,p2b=OO,p3=X1,p2c=OO+16*KB,p4=GG)[n]}")
        if ty==1:
            s("s_add_u32 m0, s50, s29")
            for j in range(4): s.op(S,f"buffer_load_dwordx4 v{26+j}, s[36:39], s23 offen offset:{1024*j} lds")
            s("s_add_u32 m0, s50, s31\ns_mov_b32 exec_hi, 0"); s.op(S,"buffer_load_dwordx4 v5, s[36:39], s30 offen lds"); s("s_mov_b32 exec_hi, -1\ns_add_u32 s23, s23, 128\ns_add_u32 s30, s30, 128")
        for kk in range([0,0,2,1][ty]):
            s(f"s_add_u32 m0, s50, {8192+kk*8192 if ty==2 else 16384}")
            for o in (0,1024): s.op(S,f"buffer_load_dwordx4 v4, s[4:7], s23 offen offset:{o} sc1 lds")
            s(f"s_add_u32 s23, s23, {KB}")
        s(f"s_add_u32 s50, s50, {2*SLOT if ty==1 else SLOT}\ns_cmp_ge_u32 s50, {EX}\ns_cselect_b32 s50, s27, s50")
    def flag(s,v):
        s.np+=1; s(f"s_cmp_lg_u32 s16, 0\ns_cbranch_scc1 NF{s.np}\nv_mov_b32 v14, {v}\ns_mov_b64 exec, 1\nbuffer_store_dword v14, v15, s[4:7], s51 offen sc1\ns_mov_b64 exec, -1\nNF{s.np}:")
    def poll(s,v,val,first=True,srd="s[4:7], s51"):
        s.np+=1; k=s.np
        if not first: s(f"s_branch PC{k}")
        s(f"PL{k}:\nbuffer_load_dword v16, v{v}, {srd} offen sc1\ns_waitcnt vmcnt(0)\nPC{k}:\nv_cmp_gt_u32 vcc, {val}, v16\ns_nop 1\ns_cmp_eq_u64 vcc, 0\ns_cbranch_scc1 PD{k}\ns_sub_u32 s49, s49, 1\ns_cbranch_scc0 PL{k}\ns_mov_b32 s49, 0\nPD{k}:")
        if first: s.q=[]
    def nbpoll(s,v): s.op('nb',f"buffer_load_dword v16, v{v}, s[4:7], s51 offen sc1")
    def nbcheck(s,v,val): s.wait('nb'); s.poll(v,val,False)
    def emit(s,a):
        i=0;k=0
        while i<len(s.steps):
            j=i
            while j<len(s.steps) and s.steps[j]==s.steps[i]: j+=1
            if j-i>2: k+=1; a(f"s_mov_b32 s24, {j-i}\nPS{k}:"); a(s.steps[i]); a(f"s_sub_u32 s24, s24, 1\ns_cmp_lg_u32 s24, 0\ns_cbranch_scc1 PS{k}")
            else:
                for _ in range(j-i): a(s.steps[i])
            i=j
def colsum(j,L,T,base):
    unpack(j,T,L,4)
    for i in range(1,8):
        unpack(j,T+8,L+4*i,4)
        for e in range(4): j(f"v_pk_add_f32 {vr(T+2*e,2)}, {vr(T+2*e,2)}, {vr(T+8+2*e,2)}")
    for r in range(T,T+8): j(f"v_add_f32_dpp v{r}, v{r}, v{r} row_ror:8 row_mask:0xf bank_mask:0xf")
    for e in range(4): j(f"v_permlane16_swap_b32 v{T+e}, v{T+4+e}")
    for e in range(4): j(f"v_add_f32 v{T+e}, v{T+e}, v{T+4+e}\nv_mov_b32 v{T+4+e}, v{T+e}")
    for e in range(4): j(f"v_permlane32_swap_b32 v{T+e}, v{T+4+e}")
    for e in range(4): j(f"v_add_f32 v{T+e}, v{T+e}, v{T+4+e}")
    j(f"@s_add_u32 s19, s32, {base}|s_mov_b64 exec, 0xff00ff|buffer_store_dwordx4 {vr(T)}, v19, s[4:7], s19 offen sc1|s_mov_b64 exec, -1")
def stats(a,X,U,T):
    P=lambda r:vr(T+2*r,2); E=lambda r,i:vr(U+16*r+2*i,2)
    unpack(a,U,X,16)
    for r in range(2): a(f"v_pk_add_f32 {P(r)}, {E(r,0)}, {E(r,1)}")
    for i in range(2,8):
        for r in range(2): a(f"v_pk_add_f32 {P(r)}, {P(r)}, {E(r,i)}")
    a(f"v_add_f32 v{T}, v{T}, v{T+1}\nv_add_f32 v{T+2}, v{T+2}, v{T+3}"); red64(a,[T,T+2],T+4)
    a(f"v_mul_f32 v{T+8}, {fl(-1/1024)}, v{T}\nv_mul_f32 v{T+9}, {fl(-1/1024)}, v{T+2}")
    for i in range(8):
        for r in range(2): a(f"v_pk_add_f32 {E(r,i)}, {E(r,i)}, {vr(T+8,2)} op_sel:[0,{r}] op_sel_hi:[1,{r}]")
    for r in range(2): a(f"v_pk_mul_f32 {P(r)}, {E(r,0)}, {E(r,0)}")
    for i in range(1,8):
        for r in range(2): a(f"v_pk_fma_f32 {P(r)}, {E(r,i)}, {E(r,i)}, {P(r)}")
    a(f"v_add_f32 v{T}, v{T}, v{T+1}\nv_add_f32 v{T+2}, v{T+2}, v{T+3}"); red64(a,[T,T+2],T+4)
    for r in range(2): a(f"v_mul_f32 v{T+2*r}, {fl(1/1024)}, v{T+2*r}\nv_add_f32 v{T+6+r}, {fl(1e-5)}, v{T+2*r}\nv_rsq_f32 v{T+6+r}, v{T+6+r}")
    for r in range(2): a(f"v_mul_f32 v{T+2*r}, v{T+2*r}, v{T+6+r}\nv_mul_f32 v{T+2*r}, v{T+2*r}, v{T+6+r}\nv_add_f32 v{T+2*r}, {fl(1e-5)}, v{T+2*r}\nv_rsq_f32 v{T+2*r}, v{T+2*r}\nv_mul_f32 v{T+10+r}, v{T+2*r}, v{T+6+r}")
    for k in range(3): a(f"@s_add_u32 s19, s33, {CS+8192*k}|s_mov_b64 exec, 1|buffer_store_dwordx2 {vr(T+6+2*k,2)}, v18, s[4:7], s19 offen sc1|s_mov_b64 exec, -1")
def producer(a):
    a("s_setprio 1\ns_sub_u32 s16, s16, 4\ns_lshl_b32 s26, s16, 10\ns_lshl_b32 s27, s16, 11\ns_lshl_b32 s28, s16, 8")
    a("v_lshrrev_b32 v6, 3, v0\nv_and_b32 v8, 7, v0\nv_lshrrev_b32 v7, 4, v0\nv_xor_b32 v26, v7, v8\nv_lshlrev_b32 v26, 4, v26\nv_lshl_add_u32 v26, v6, 11, v26\ns_lshl_b32 s19, s16, 16\nv_add_u32 v26, s19, v26")
    a("v_xor_b32 v27, 64, v26\nv_add_u32 v27, 15360, v27\nv_add_u32 v28, 30720, v26\nv_add_u32 v29, 30720, v27")
    a("s_lshl_b32 s19, s16, 1\nv_add_u32 v5, s19, v7\nv_xor_b32 v5, v5, v8\nv_and_b32 v5, 7, v5\nv_lshlrev_b32 v5, 4, v5\nv_lshl_add_u32 v5, v6, 11, v5\ns_lshl_b32 s19, s16, 13\nv_add_u32 v5, s19, v5")
    a("s_cmp_eq_u32 s16, 3\ns_movk_i32 s34, 6144\ns_cmov_b32 s34, 2048\nv_lshlrev_b32 v20, 4, v8\nv_mad_u32_u24 v25, v6, s34, v20\nv_mul_u32_u24 v17, 7168, v6\nv_add_u32 v17, v17, v20\nv_lshlrev_b32 v19, 4, v7\nv_lshl_add_u32 v19, v8, 5, v19")
    a("s_lshl_b32 s19, s16, 3\nv_add_u32 v6, s19, v6\nv_and_b32 v20, 1, v7\ns_and_b32 s19, s16, 1\ns_lshl_b32 s19, s19, 2\nv_lshl_add_u32 v20, v20, 1, s19\nv_xor_b32 v20, v20, v8\nv_lshlrev_b32 v20, 4, v20")
    a("v_lshlrev_b32 v7, 1, v7\nv_xor_b32 v7, v7, v8\nv_lshlrev_b32 v7, 4, v7")
    for v,rb,z in ((2,6144,20),(24,2048,20),(3,2048,7),(9,7168,7)): a(f"s_mov_b32 s19, {rb}\nv_mad_u32_u24 v{v}, v6, s19, v{z}")
    a("v_lshlrev_b32 v6, 4, v0\nv_add_u32 v4, s27, v6\nv_mov_b32 v18, 0")
    a(f"s_add_u32 s29, s27, 16384\ns_mul_i32 s31, s16, 1536\ns_sub_u32 s31, 32768, s31\ns_mov_b32 s20, s26\ns_mov_b32 s50, s27\ns_mov_b32 s51, {FL}\ns_mov_b32 s49, 100000")
    a("s_lshl_b32 s33, s3, 3\ns_lshl_b32 s19, s16, 1\ns_add_u32 s33, s33, s19\ns_lshl_b32 s35, s33, 11\ns_lshl_b32 s33, s33, 2")
    a("s_waitcnt lgkmcnt(0)\ns_mov_b32 s54, 256\ns_mov_b32 s55, 0x20000\n"+setsrd(36,PX,4*MB))
    p=Prod()
    p.A(0); p.W(0); p.W(1)
    for i in range(4): p.op('x',f"buffer_load_dwordx4 {vr(128+4*i)}, v6, s[36:39], s35 offen offset:{i*1024}")
    p.A(2); p.W(2); p.W(3); p.A(4); p.W(4); p.W(5)
    p(f"s_cmp_eq_u32 s16, 3\ns_cselect_b32 s60, s{PW1}, s{PQKV}\ns_cselect_b32 s61, s{PW1+1}, s{PQKV+1}\ns_cselect_b32 s62, s14, s10\ns_mov_b32 s63, 0x20000\ns_cselect_b32 s19, 0, s27\ns_lshl_b32 s25, s18, 7\ns_add_u32 s19, s19, s25\ns_lshl_b32 s34, s34, 3\ns_mul_i32 s25, s17, s34\ns_lshl_b32 s25, s25, 3\ns_add_u32 s19, s19, s25")
    for i in range(8): p.op('c1',f"buffer_load_dwordx4 {vr(32+4*i)}, v25, s[60:63], s19 offen"); p("s_add_u32 s19, s19, s34")
    p("s_lshl_b32 s19, s17, 4\nv_min_u32 v10, 17, v0\nv_add_u32 v10, s19, v10\nv_add_u32 v10, -2, v10\nv_max_i32 v10, 0, v10\nv_lshlrev_b32 v10, 7, v10")
    p("v_min_u32 v11, 47, v0\nv_add_u32 v11, s19, v11\nv_add_u32 v11, -16, v11\nv_max_i32 v11, 0, v11\nv_min_u32 v11, 255, v11\nv_lshlrev_b32 v11, 7, v11")
    p("v_and_b32 v12, 15, v0\nv_lshl_add_u32 v13, v12, 4, s18\nv_lshlrev_b32 v13, 7, v13\nv_add_u32 v12, s19, v12\nv_lshlrev_b32 v12, 7, v12\ns_lshl_b32 s19, s3, 7\nv_mov_b32 v15, s19\nv_cmp_gt_u32 vcc, 32, v0\nv_cndmask_b32 v10, v13, v10, vcc")
    p("s_lshl_b32 s32, s18, 14\ns_lshl_b32 s19, s17, 10\ns_add_u32 s32, s32, s19\ns_add_u32 s32, s32, s28\nv_lshl_add_u32 v20, v0, 2, s28")
    p.step()
    side={}
    def job(f,tag,S0,n):
        j=A(); f(j); L=j.L
        for k in range(n): side[S0+k]=(tag if k==0 else None,L[len(L)*k//n:len(L)*(k+1)//n])
    job(lambda j:stats(j,128,144,176),'x',1,4); job(lambda j:colsum(j,32,64,CS1),'c1',5,4); job(lambda j:colsum(j,80,112,CS3),'c3',14,4)
    def gcs(base):
        p(f"s_lshl_b32 s19, s18, 14\ns_add_u32 s19, s19, {base}")
        for i in range(16):
            p.op('g',f"buffer_load_dword v{32+i}, v20, s[4:7], s19 offen offset:{1024*(i&3)} sc1")
            if i&3==3: p("s_add_u32 s19, s19, 4096")
    for S in range(NST):
        p.wait(*([S,'st','nb'] if S==12 else [S]));
        if S==12: p.poll(18,1,False,"s[52:55], 0")
        p("s_barrier"); N=S+R-2
        if S==7: p.op('nb',"buffer_load_dword v16, v18, s[52:55], 0 offen sc1")
        if S==12: p.flag(1); stamp(p,1)
        if S==10:
            p(f"s_mul_i32 s19, s18, 448\ns_and_b32 s19, s19, 0xffffff80\ns_mul_i32 s25, s17, {64*7168}\ns_add_u32 s19, s19, s25\ns_lshl_b32 s25, s16, 7\ns_add_u32 s19, s19, s25\n"+setsrd(60,PW3,7*MB))
            for i in range(8): p.op('c3',f"buffer_load_dwordx4 {vr(80+4*i)}, v17, s[60:63], s19 offen"); p(f"s_add_u32 s19, s19, {8*7168}")
        if S==18: p.nbpoll(10)
        if S==22:
            p.nbcheck(10,1); stamp(p,2); gcs(CS1)
            p(f"v_min_u32 v21, 35, v0\nv_lshlrev_b32 v21, 4, v21\ns_mul_i32 s19, s16, 576\ns_add_u32 s19, s19, {EX2+1024}\nv_add_u32 v22, s19, v21\ns_lshl_b32 s19, s17, 9\ns_sub_u32 s19, s19, 64\nv_add_u32 v21, s19, v21\nv_max_i32 v21, 0, v21\ns_lshl_b32 s19, s16, 13\ns_add_u32 s19, s19, {CS}")
            p.op('g',"buffer_load_dwordx4 v[48:51], v21, s[4:7], s19 offen sc1")
        if S==27:
            p.wait('g')
            for i in range(1,8): p(f"v_pk_add_f32 v[32:33], v[32:33], {vr(32+2*i,2)}")
            p(f"v_add_f32 v32, v32, v33\nv_add_u32 v21, {EX2}, v20\nds_write_b32 v21, v32\nds_write_b128 v22, v[48:51]\ns_waitcnt lgkmcnt(0)")
        if S==35: p.flag(3)
        if S==51: p.flag(4); stamp(p,5)
        if S==91: p.flag(5); stamp(p,7)
        if S==44: p.nbcheck(12,3)
        if S==62:
            p.nbcheck(13,2)
            gcs(CS3)
            p(f"v_and_b32 v21, 31, v0\nv_lshl_add_u32 v22, v21, 3, s28\nv_lshrrev_b32 v21, 5, v0\nv_lshl_add_u32 v21, v21, 17, v22\ns_lshl_b32 s19, s17, 10\ns_add_u32 s19, s19, {ST}")
            for i in range(8): p.op('g',f"buffer_load_dwordx2 {vr(48+2*i,2)}, v21, s[4:7], s19 offen sc1"); p("s_add_u32 s19, s19, 16384")
        if S in (40,58): p.nbpoll(12 if S==40 else 13)
        if R<=N<NST and N not in (36,37):
            if N>=36: p.A(N)
            elif N<32 and N&1: p.A(N-1)
            p.W(N)
        if S in side:
            tag,L=side[S]
            if tag: p.wait(tag)
            for x in L:
                if x[0]=='@':
                    y=x[1:].split('|'); p(y[0]); p(y[1]); p.op('st',y[2]); p(y[3])
                else: p(x)
        if S==67:
            p.wait('g')
            for i in range(1,8): p(f"v_pk_add_f32 v[32:33], v[32:33], {vr(32+2*i,2)}\nv_pk_add_f32 v[48:49], v[48:49], {vr(48+2*i,2)}")
            p(f"v_add_f32 v32, v32, v33\nv_mov_b32 v50, v48\nv_mov_b32 v51, v49\nv_add_u32 v20, {EX}, v20\nds_write_b32 v20, v32")
            p("v_permlane32_swap_b32 v48, v50\nv_permlane32_swap_b32 v49, v51\nv_add_f32 v48, v48, v50\nv_add_f32 v49, v49, v51")
            p(f"v_mul_f32 v48, {fl(-1/1024)}, v48\nv_mul_f32 v49, {fl(1/1024)}, v49\nv_fma_f32 v49, -v48, v48, v49\nv_max_f32 v49, 0, v49\nv_add_f32 v49, {fl(1e-5)}, v49\nv_rsq_f32 v49, v49\nv_add_u32 v22, {EX+1024}, v22\nds_write_b64 v22, v[48:49]\ns_waitcnt lgkmcnt(0)")
        if S==31:
            p("s_barrier"); p.W(36); p.W(37); p("s_barrier"); p.flag(2); stamp(p,3); p.poll(11,2); stamp(p,4)
            for x in range(32,38): p.A(x)
        if S==51: p.poll(12,4); stamp(p,6)
        if S==91: p.poll(12,5); stamp(p,8)
        p.step()
    p.emit(a); stamp_end(a,1); a("s_endpgm")

def p1(a):
    c=Cfg(); c.KS=32;c.R=R;c.NS=32;c.WB=16384;c.SLOT=SLOT
    a("s_lshr_b32 s32, s16, 1\ns_and_b32 s33, s16, 1\ns_lshl_b32 s34, s33, 1\ns_add_u32 s35, s34, 1\ns_lshl_b32 s36, s32, 2")
    c.vWb=216;c.vW=218;c.vAb=220;c.vA=222;c.vWr=24;c.vAr=40;c.w2off=512
    c.sadv=lambda s:16384 if s&1 else 34816
    c.aupd=lambda s:f'v_add_u32 v222, s20, v{220+(s&1)}'
    ACC=80; HAL=208; CC=236; MK=224
    consumer_addr(a,c,['s34','s35'],'s36')
    c.wmap=[(j&1,(j>>1)*4096) for j in range(8)]; c.MI=4;c.LA=3;c.U=2;c.swap={4,5}
    c.acc=lambda i,j:ACC+32*i+4*j
    a(f"s_lshl_b32 s37, s17, 7\ns_lshl_b32 s19, s32, 6\ns_add_u32 s37, s37, s19\nv_and_b32 v2, 15, v0\nv_lshrrev_b32 v3, 4, v0\nv_lshrrev_b32 v4, 1, v2\nv_xor_b32 v4, v4, v3\nv_lshlrev_b32 v4, 4, v4\nv_lshl_add_u32 v4, v2, 7, v4\ns_lshl_b32 s19, s32, 13\ns_add_u32 s19, s19, 16384\nv_add_u32 v220, s19, v4\nv_xor_b32 v221, 64, v220\nv_subrev_u32 v221, 34816, v221")
    a(f"v_lshrrev_b32 v3, 4, v0\nv_lshlrev_b32 v3, 2, v3\nv_sub_u32 v3, v2, v3\nv_mov_b32 v6, {fl(-1e30)}")
    for e in range(4):
        for h in range(2):
            a(f"v_add_u32 v4, {16-16*h-e}, v3\nv_and_b32 v4, 0xfffffff1, v4\nv_cmp_eq_u32 vcc, 0, v4\nv_cndmask_b32 v{MK+4*h+e}, v6, 0, vcc")
    a("s_cmp_eq_u32 s37, 0\ns_cselect_b64 vcc, -1, 0")
    for e in range(4): a(f"v_cndmask_b32 v{MK+8+e}, v{MK+e}, v6, vcc")
    zero(a,ACC,136); gelu_consts(a)
    a(f"s_lshl_b32 s38, s18, 1\ns_add_u32 s38, s38, s33\ns_lshl_b32 s39, s38, 17\ns_lshl_b32 s19, s37, 6\ns_add_u32 s46, s39, s19\ns_add_u32 s46, s46, {OO}\ns_add_u32 s39, s39, {HS}")
    a("s_lshr_b32 s19, s38, 4\ns_add_u32 s19, s19, 1\ns_sub_u32 s47, 0, s19\ns_bitcmp1_b32 s38, 3\ns_cselect_b32 s19, s47, s19\ns_add_u32 s19, s19, s37")
    a("v_add_u32 v3, s19, v2\nv_and_b32 v4, 48, v0\nv_lshlrev_b32 v4, 4, v4")
    for i in range(4):
        a(f"v_add_u32 v6, {16*i}, v3\nv_and_b32 v7, 0x7ff, v6")
        if i in (0,3): a(f"v_cmp_eq_u32 s[{28+i//3*2}:{29+i//3*2}], v6, v7")
        a(f"v_lshrrev_b32 v6, 4, v7\nv_and_b32 v7, 15, v7\nv_lshl_add_u32 v7, v7, 4, v4\nv_lshl_add_u32 v{8+i}, v6, 10, v7")
    a(f"s_mul_i32 s19, s33, 3072\ns_add_u32 s19, s19, {EX}\nv_lshlrev_b32 v12, 4, v0\nv_add_u32 v2, s19, v12")
    a("s_mov_b32 s20, 0"); pre=""
    pre2=f"v_and_b32 v4, 15, v0\nv_lshlrev_b32 v4, 2, v4\nv_and_b32 v5, 48, v0\ns_lshl_b32 s19, s33, 7\ns_add_u32 s19, s19, {EX2}\nv_add_u32 v3, s19, v5\nv_add_u32 v6, s19, v4\ns_lshl_b32 s19, s32, 8\ns_add_u32 s19, s19, {EX2+1024}\nv_add_u32 v13, s19, v5\nv_add_u32 v4, s19, v4\nv_add_u32 v5, 576, v4\n"
    pre2+="ds_read_b128 v[236:239], v3 offset:768\nds_read_b128 v[240:243], v3 offset:832\n"+"\n".join(f"ds_read2_b32 {vr(244+2*i,2)}, v5 offset0:{16+16*i} offset1:{160+16*i}" for i in range(4))
    pre+="\ns_lshl_b32 s19, s2, 2\ns_add_u32 s19, s19, s16\ns_mul_i32 s21, s19, 7168\ns_lshl_b32 s19, s19, 11\nv_lshlrev_b32 v4, 5, v0\nv_mul_u32_u24 v5, 56, v0\n"
    pre+=setsrd(60,PW2,2*MB)+"\nbuffer_load_dword v18, v4, s[60:63], s19 offen\n"+setsrd(60,PWO,2*MB)+"\nbuffer_load_dword v19, v4, s[60:63], s19 offen\n"+setsrd(60,PW4,7*MB)
    pre+="\nbuffer_load_dword v16, v5, s[60:63], s21 offen\nbuffer_load_dword v17, v5, s[60:63], s21 offen offset:3584"
    a(f"s_cmp_eq_u32 s32, 1\ns_cbranch_scc1 C1")
    for wm in range(2):
        if wm: a("C1:")
        c.hal={2:(HAL,False),3:(HAL+4,False)} if wm==0 else {4:(HAL,True),5:(HAL+4,True)}
        c.aoff=lambda kk,i:i*2048 if i<4 else 16384-8192*wm
        mainloop(a,c,f"p1{wm}",[(5,""),(10,pre),(1,pre2)],3)
        Q=lambda i:24+4*i; K=lambda i:44+4*i; V=lambda d,i:62+10*d+2*i
        H=lambda i:c.acc(i,6)
        a("s_waitcnt vmcnt(0)")
        VS=[(56,60),(64,68),(72,76),(220,252),(236,240)]
        for j in range(4): a(f"ds_read_b128 {vr(40+4*j)}, v3 offset:{(j>>1)*256+(j&1)*64}")
        for i in range(4): a(f"ds_read2_b32 {vr(16+2*i,2)}, v4 offset0:{160+16*i} offset1:{16+16*i}")
        a("ds_read2_b32 v[218:219], v6 offset0:128 offset1:144")
        if wm==0: a("ds_read2_b32 v[216:217], v4 offset0:144 offset1:0")
        for i in range(4): a(f"ds_read_b128 {vr(VS[i][0])}, v13 offset:{640+64*i}\nds_read_b128 {vr(VS[i][1])}, v13 offset:{64+64*i}")
        def corr(b,n,cs,st):
            for e in range(n): a(f"v_pk_fma_f32 {vr(b+2*e,2)}, {vr(cs+2*e,2)}, {vr(st,2)}, {vr(b+2*e,2)} op_sel_hi:[1,0,1]")
            for e in range(n): a(f"v_pk_mul_f32 {vr(b+2*e,2)}, {vr(b+2*e,2)}, {vr(st,2)} op_sel:[0,1] op_sel_hi:[1,1]")
        def corrv(b,i):
            for e in range(4): a(f"v_pk_fma_f32 {vr(b+2*e,2)}, {vr(VS[i][0]+2*(e&1),2)}, v[218:219], {vr(b+2*e,2)} op_sel:[0,{e>>1},0] op_sel_hi:[1,{e>>1},1]")
            for e in range(4): a(f"v_pk_mul_f32 {vr(b+2*e,2)}, {vr(b+2*e,2)}, {vr(VS[i][1]+2*(e&1),2)}")
        for ii in ((3,2),(1,0)):
            for i in ii: corr(H(i),4,236,244+2*i)
            if wm==1 and ii[0]==1: a("v_subrev_u32 v13, 256, v13\nds_read_b128 v[236:239], v13 offset:576\nds_read_b128 v[240:243], v13")
            gelu(a,[H(i)+2*e for i in ii for e in range(4)],24)
            for i in ii:
                cvt(a,H(i),H(i),4)
                if (wm==0 and i==0) or (wm==1 and i==3):
                    for e in range(4): a(f"v_cndmask_b32 v{H(i)+e}, 0, v{H(i)+e}, s[{28+i//3*2}:{29+i//3*2}]")
                a(f"buffer_store_dwordx4 {vr(H(i))}, v{8+i}, s[4:7], s39 offen sc1")
        a("s_waitcnt lgkmcnt(0)")
        for i in range(4): corr(c.acc(i,0),8,40,16+2*i); corrv(c.acc(i,4),i)
        if wm==0: corr(HAL,4,48,216)
        else: corrv(HAL,4)
        if wm==0:
            cvt(a,K(3),c.acc(3,2),4); cvt(a,4,c.acc(3,4),4)
            a(f"ds_write_b128 v2, {vr(K(3))}\nds_write_b128 v2, v[4:7] offset:1024")
            cvt(a,K(-1),HAL,4)
        else:
            cvt(a,4,HAL,4); a("ds_write_b128 v2, v[4:7] offset:2048"); cvt(a,K(3),c.acc(3,2),4)
        for i in range(4):
            cvt(a,Q(i),c.acc(i,0),4)
            if i<3: cvt(a,K(i),c.acc(i,2),4)
            for d in range(2): cvt(a,V(d,i),c.acc(i,4+d),2)
        a("s_waitcnt lgkmcnt(0)\ns_barrier")
        if wm==0: a(f"ds_read_b64 {vr(V(0,-1),2)}, v2 offset:2048\nds_read_b64 {vr(V(1,-1),2)}, v2 offset:2056")
        else: a(f"ds_read_b128 {vr(K(-1))}, v2\nds_read_b64 {vr(V(0,-1),2)}, v2 offset:1024\nds_read_b64 {vr(V(1,-1),2)}, v2 offset:1032")
        S=lambda i:c.acc(i,0); T=lambda i:c.acc(i,2); I=(3,2,1,0)
        for i in I:
            a(f"{MF} {vr(S(i)+4)}, {vr(K(i))}, {vr(Q(i))}, {vr(MK+4)}")
            if i==0: a("s_waitcnt lgkmcnt(0)")
            a(f"{MF} {vr(S(i))}, {vr(K(i-1))}, {vr(Q(i))}, {vr(MK+8 if i==0 else MK)}")
        for i in I: a(f"v_max3_f32 v{T(i)}, v{S(i)}, v{S(i)+1}, v{S(i)+2}\nv_max3_f32 v{T(i)+1}, v{S(i)+3}, v{S(i)+4}, v{S(i)+5}")
        for i in I: a(f"v_max3_f32 v{T(i)}, v{T(i)}, v{S(i)+6}, v{S(i)+7}")
        for i in I: a(f"v_max_f32 v{T(i)}, v{T(i)}, v{T(i)+1}")
        def xred(op):
            for sw in ('16','32'):
                for i in I: a(f"v_mov_b32 v{T(i)+1}, v{T(i)}")
                for i in I: a(f"v_permlane{sw}_swap_b32 v{T(i)}, v{T(i)+1}")
                for i in I: a(f"{op} v{T(i)}, v{T(i)}, v{T(i)+1}")
        xred("v_max_f32")
        sc=32**-0.5*1.4426950408889634
        a(f"s_mov_b32 s44, {fl(sc)}\ns_mov_b32 s45, {fl(sc)}")
        for i in I: a(f"v_mul_f32 v{T(i)}, {fl(-sc)}, v{T(i)}")
        for i in I:
            for e in range(4): a(f"v_pk_fma_f32 {vr(S(i)+2*e,2)}, {vr(S(i)+2*e,2)}, s[44:45], {vr(T(i),2)} op_sel_hi:[1,1,0]")
        for i in I:
            for e in range(8): a(f"v_exp_f32 v{S(i)+e}, v{S(i)+e}")
        a("s_waitcnt vmcnt(0)\ns_barrier")
        for i in I: a(f"v_pk_add_f32 {vr(T(i),2)}, {vr(S(i),2)}, {vr(S(i)+2,2)}\nv_pk_add_f32 {vr(T(i)+2,2)}, {vr(S(i)+4,2)}, {vr(S(i)+6,2)}")
        for i in I: a(f"v_pk_add_f32 {vr(T(i),2)}, {vr(T(i),2)}, {vr(T(i)+2,2)}")
        for i in I: a(f"v_add_f32 v{T(i)}, v{T(i)}, v{T(i)+1}")
        xred("v_add_f32")
        for i in I: a(f"v_rcp_f32 v{T(i)}, v{T(i)}")
        for i in I:
            for e in range(4): a(f"v_pk_mul_f32 {vr(S(i)+2*e,2)}, {vr(S(i)+2*e,2)}, {vr(T(i),2)} op_sel_hi:[1,0]")
        for i in I: cvt(a,Q(i),S(i),4)
        for i in I:
            for d in range(2): a(f"{MF} {vr(S(i)+4*d)}, {vr(V(d,i-1))}, {vr(Q(i))}, 0")
        for i in I:
            cvt(a,Q(i),S(i),4); a(f"buffer_store_dwordx4 {vr(Q(i))}, v12, s[4:7], s46 offen offset:{1024*i} sc1")
        if wm==0: a("s_branch P2")
    a("P2:")
OUT=188
def cfg2(a,NS,U):
    c=Cfg(); c.KS=64;c.R=R;c.NS=NS;c.WB=8192;c.SLOT=SLOT
    c.vWb=16;c.vW=20;c.vAb=6;c.vA=7;c.vWr=44;c.vAr=60
    if a: a("s_lshl_b32 s21, s16, 1"); consumer_addr(a,c,[0,1,2,3],'s21')
    c.wmap=[(j,0) for j in range(4)]; c.MI=2;c.LA=3;c.U=U;c.swap=set();c.hal=None
    c.acc=lambda i,j:OUT+16*i+4*j
    return c
def p2(a):
    c=cfg2(a,16,2); RN=220; RX=236
    a(f"s_lshl_b32 s37, s17, 7\ns_lshl_b32 s19, s16, 5\ns_add_u32 s37, s37, s19\ns_lshl_b32 s39, s18, 18\ns_lshl_b32 s19, s37, 6\ns_add_u32 s39, s39, s19\ns_add_u32 s36, s39, {KB}")
    rowmaj_off(a,13)
    a("s_lshl_b32 s48, s37, 11\ns_lshl_b32 s19, s18, 7\ns_add_u32 s48, s48, s19\ns_add_u32 s49, s48, 32768")
    a(f"v_and_b32 v4, 15, v0\ns_lshl_b32 s19, s16, 7\ns_add_u32 s19, s19, {EX2+1024}\nv_lshl_add_u32 v4, v4, 2, s19\nds_read2_b32 v[8:9], v4 offset0:160 offset1:16\nds_read2_b32 v[10:11], v4 offset0:176 offset1:32\n"+setsrd(8,PX,4*MB))
    zero(a,OUT,32)
    pre="s_waitcnt vmcnt(0)\n"
    for i in range(2):
        for p in range(2): pre+=f"buffer_load_dwordx4 {vr(RX+8*i+4*p)}, v13, s[8:11], s{48+i} offen offset:{64*p}\n"
    mainloop(a,c,"p2a",[(1,""),(7,pre)],5)
    a(f"s_waitcnt vmcnt(0)\ns_add_u32 s39, s39, {X1}\ns_add_u32 s36, s36, {X1}")
    for i in range(2):
        for p in range(2):
            q=RX+8*i+4*p; u=76+16*i+8*p; b=c.acc(i,2*p)
            a(f"v_permlane16_swap_b32 v{q}, v{q+2}\nv_permlane16_swap_b32 v{q+1}, v{q+3}"); unpack(a,u,q,4)
            for e in range(4): a(f"v_pk_add_f32 {vr(28+2*e,2)}, {vr(u+2*e,2)}, {vr(8+2*i,2)} op_sel_hi:[1,0]")
            for e in range(4): a(f"v_pk_fma_f32 {vr(b+2*e,2)}, {vr(28+2*e,2)}, {vr(8+2*i,2)}, {vr(b+2*e,2)} op_sel:[0,1,0] op_sel_hi:[1,1,1]")
            cvt(a,RN+8*i+4*p,c.acc(i,2*p),4)
            a(f"buffer_store_dwordx4 {vr(RN+8*i+4*p)}, v12, s[4:7], s{36 if p else 39} offen offset:{1024*i} sc1")
    SU=lambda i:28+4*i; SQ=lambda i:30+4*i
    for i in range(2): a(f"v_pk_add_f32 {vr(SU(i),2)}, {vr(c.acc(i,0),2)}, {vr(c.acc(i,0)+2,2)}\nv_pk_mul_f32 {vr(SQ(i),2)}, {vr(c.acc(i,0),2)}, {vr(c.acc(i,0),2)}")
    for e in range(1,8):
        for i in range(2):
            x=vr(c.acc(i,0)+2*e,2)
            if e>1: a(f"v_pk_add_f32 {vr(SU(i),2)}, {vr(SU(i),2)}, {x}")
            a(f"v_pk_fma_f32 {vr(SQ(i),2)}, {x}, {x}, {vr(SQ(i),2)}")
    for i in range(2): a(f"v_add_f32 v{SU(i)}, v{SU(i)}, v{SU(i)+1}\nv_add_f32 v{SQ(i)}, v{SQ(i)}, v{SQ(i)+1}")
    a(f"v_and_b32 v4, 31, v0\nv_lshlrev_b32 v4, 3, v4\nv_lshrrev_b32 v5, 5, v0\nv_lshl_add_u32 v4, v5, 2, v4\ns_lshl_b32 s19, s18, 14\ns_lshl_b32 s37, s37, 3\ns_add_u32 s19, s19, s37\ns_add_u32 s19, s19, {ST}")
    for F in (SU,SQ): a(f"v_permlane16_swap_b32 v{F(0)}, v{F(1)}")
    for F in (SU,SQ): a(f"v_add_f32 v{F(0)}, v{F(0)}, v{F(1)}")
    a(f"v_permlane32_swap_b32 v{SU(0)}, v{SQ(0)}\nv_add_f32 v5, v{SU(0)}, v{SQ(0)}\nbuffer_store_dword v5, v4, s[4:7], s19 offen sc1")
    for e in range(16): a(f"v_pk_add_f32 {vr(OUT+2*e,2)}, {vr(OUT+2*e,2)}, {vr(76+2*e,2)}")
    zero(a,76,112)
    mainloop(a,cfg2(None,8,2),"p2b",[(1,""),(3,"s_waitcnt vmcnt(0)")],7)
def p3(a):
    c=Cfg(); c.KS=32;c.R=R;c.NS=32;c.WB=16384;c.SLOT=SLOT
    a("s_and_b32 s47, s18, 1\ns_lshl_b32 s47, s47, 1\ns_lshl_b32 s34, s33, 3\ns_add_u32 s34, s34, s47\ns_add_u32 s35, s34, 1\ns_add_u32 s36, s34, 2\ns_add_u32 s37, s34, 3\ns_add_u32 s38, s47, s33\ns_add_u32 s38, s38, 6\ns_lshl_b32 s39, s32, 2")
    c.vWb=16;c.vW=21;c.vAb=26;c.vA=27;c.vWr=28;c.vAr=44; ACC=76
    consumer_addr(a,c,['s34','s35','s36','s37','s38'],'s39')
    c.wmap=[(0,0),(1,0),(2,0),(3,0),(0,4096),(1,4096),(4,0)]; c.MI=4;c.LA=3;c.U=4;c.swap=set();c.hal=None
    c.acc=lambda i,j:ACC+28*i+4*j
    CSR=220; STR=248
    pre=A()
    pre(f"v_and_b32 v2, 48, v0\ns_lshl_b32 s19, s34, 6\ns_add_u32 s19, s19, {EX}\nv_add_u32 v3, s19, v2\ns_lshl_b32 s19, s38, 6\ns_add_u32 s19, s19, {EX}\nv_add_u32 v4, s19, v2")
    pre(f"v_and_b32 v5, 15, v0\ns_lshl_b32 s19, s32, 9\ns_add_u32 s19, s19, {EX+1024}\nv_lshl_add_u32 v5, v5, 3, s19")
    pre(f"s_mul_i32 s34, s18, {7*KB}\ns_lshl_b32 s19, s17, 13\ns_add_u32 s34, s34, s19\ns_lshl_b32 s19, s32, 12\ns_add_u32 s34, s34, s19\ns_add_u32 s34, s34, {GG}")
    pre(f"s_lshl_b32 s19, s33, 3\ns_add_u32 s38, s34, s19\ns_add_u32 s38, s38, {3*KB}\ns_lshl_b32 s19, s33, 19\ns_add_u32 s34, s34, s19\ns_add_u32 s35, s34, {KB}\ns_add_u32 s36, s34, {2*KB}")
    a("\n".join(pre.L))
    mainloop(a,c,"p3",None,9)
    for i in range(4): a(f"ds_read_b64 {vr(STR+2*i,2)}, v5 offset:{128*i}")
    for j in range(6): a(f"ds_read_b128 {vr(CSR+4*j)}, v3 offset:{64*j}")
    a(f"ds_read_b128 {vr(CSR+24)}, v4")
    c4=cfg2(a,64,2)
    a("s_waitcnt lgkmcnt(0)")
    for i in range(4):
        prs=[c.acc(i,0)+2*e for e in range(14)]
        for e,p in enumerate(prs): a(f"v_pk_fma_f32 {vr(p,2)}, {vr(CSR+2*e,2)}, {vr(STR+2*i,2)}, {vr(p,2)} op_sel_hi:[1,0,1]")
        for e,p in enumerate(prs): a(f"v_pk_mul_f32 {vr(p,2)}, {vr(p,2)}, {vr(STR+2*i,2)} op_sel:[0,1] op_sel_hi:[1,1]")
        gelu(a,prs,28)
        pk=c.acc(i,0); cvt(a,pk,pk,14)
        for p in range(3): a(f"buffer_store_dwordx4 {vr(pk+4*p)}, v12, s[4:7], s{34+p} offen offset:{1024*i} sc1")
        a(f"buffer_store_dwordx2 {vr(pk+12,2)}, v12, s[4:7], s38 offen offset:{1024*i} sc1")
    mainloop(a,c4,"p4",[(1,""),(31,"s_waitcnt vmcnt(0)")],11)
    a(setsrd(12,56,4*MB))
    for q in range(4):
        cvt(a,OUT+8*q,OUT+8*q,4); r=OUT+8*q
        a(f"v_permlane16_swap_b32 v{r}, v{r+2}\nv_permlane16_swap_b32 v{r+1}, v{r+3}\nbuffer_store_dwordx4 {vr(r)}, v13, s[12:15], s{48+(q>>1)} offen offset:{64*(q&1)}")
    stamp_end(a,0)
def build(out,lst):
    n=NAME+"_kernel"; a=A()
    a(f".globl {n}\n.p2align 8\n.type {n},@function\n{n}:\ns_cmp_ge_u32 s2, 256\ns_cbranch_scc1 END")
    a("s_load_dwordx16 s[64:79], s[0:1], 0\ns_load_dwordx2 s[4:5], s[0:1], 80\ns_load_dwordx2 s[52:53], s[0:1], 72\ns_load_dwordx2 s[56:57], s[0:1], 64")
    a("v_lshrrev_b32 v1, 6, v0\nv_and_b32 v0, 63, v0\nv_readfirstlane_b32 s16, v1")
    stamp(a,14,True); stamp(a,0)
    a("s_and_b32 s17, s2, 3\ns_lshl_b32 s17, s17, 2\ns_bfe_u32 s19, s2, 0x20003\ns_add_u32 s17, s17, s19")
    a("s_bfe_u32 s18, s2, 0x10002\ns_lshl_b32 s18, s18, 3\ns_lshr_b32 s19, s2, 5\ns_add_u32 s18, s18, s19\ns_lshl_b32 s3, s17, 4\ns_add_u32 s3, s3, s18")
    a(f"s_mov_b32 s6, {WSZ}\ns_mov_b32 s7, 0x20000\ns_cmp_lt_u32 s16, 4\ns_cbranch_scc1 CONS")
    producer(a)
    a(f"CONS:\ns_add_u32 s19, s2, s16\ns_cmp_lg_u32 s19, 0\ns_waitcnt lgkmcnt(0)\ns_cbranch_scc1 NZ\nv_lshlrev_b32 v2, 7, v0\nv_mov_b32 v4, 1\nv_mov_b32 v3, 0\ns_mov_b32 s54, 256\ns_mov_b32 s55, 0x20000")
    for i in range(4): a(f"s_mov_b32 s19, {FL+8192*i}\nbuffer_store_dword v3, v2, s[4:7], s19 offen sc1")
    a("s_waitcnt vmcnt(0)\ns_mov_b64 exec, 1\nbuffer_store_dword v4, v3, s[52:55], 0 offen sc1\ns_mov_b64 exec, -1\nNZ:")
    p1(a); p2(a); p3(a)
    a("END:\ns_endpgm")
    ref=open(f"cdna_kernels/{NAME}.s.ref").read().split("\n")
    s="\n".join(l for l in ref if l.startswith(";") and "@launch" not in l)+"\n"
    s+=f"; @launch {'kernel='+n+' ' if lst else ''}grid=(256,1,1) block=(512,1,1) lds={LDS}\n"
    s+='.amdgcn_target "amdgcn-amd-amdhsa--gfx950"\n.text\n'+a.text()+'.section .rodata,"a"\n'+kd(n,256)
    open(out,"w").write(s)
if __name__=="__main__": build(sys.argv[1],int(sys.argv[2]) if len(sys.argv)>2 else 1)
```
